```python
import torch

def _softmax(x, axis=-1):
    return torch.softmax(x, dim=axis)
def _gelu(x):
    return torch.nn.functional.gelu(x, approximate="tanh")
def _silu(x):
    return torch.nn.functional.silu(x)
def _sigmoid(x):
    return torch.sigmoid(x)
def _layernorm(x, axis=-1, eps=1e-5):
    m = x.mean(dim=axis, keepdim=True)
    v = x.var(dim=axis, keepdim=True, unbiased=False)
    return (x - m) / torch.sqrt(v + eps)
def _scatter_add(tgt, idx, src, axis=0):
    return tgt.clone().index_add_(axis, idx, src)
def _segment_sum(src, seg, n):
    out = torch.zeros((n,) + src.shape[1:], dtype=src.dtype)
    return out.index_add_(0, seg, src)
def _pad(x, pw):
    flat = tuple(v for pair in reversed(pw) for v in pair)
    return torch.nn.functional.pad(x, flat)

kernel_name = 'gather_scatter__hybrid_graph_tf_graphgps__graph'

def setup_inputs():

    _w = (lambda a: (lambda t: t.to(torch.bfloat16) if t.is_floating_point() else t)(torch.as_tensor(a)))
    N, deg, D = 10000, 64, 64
    E = N * deg
    src = (lambda lo, hi, *s: torch.randint(lo, hi, s))(0, N, E).to(torch.int64)
    dst = (lambda lo, hi, *s: torch.randint(lo, hi, s))(0, N, E).to(torch.int64)
    deg_cnt = torch.bincount(dst, minlength=N).to(float) + 1.0
    sc = 1.0 / float(D) ** 0.5
    return {
        "x": _w((lambda *s: torch.randn(*s, dtype=torch.bfloat16) * 0.05)(N, D)),
        "src": _w(src),
        "dst": _w(dst),
        "deg_inv": _w((1.0 / deg_cnt).to(float)),
        "w_msg": _w((lambda *s: torch.randn(*s, dtype=torch.bfloat16) * 0.4)(D, D) * sc),
        "wq": _w((lambda *s: torch.randn(*s, dtype=torch.bfloat16) * 1.6)(D, D) * sc),
        "wk": _w((lambda *s: torch.randn(*s, dtype=torch.bfloat16) * 1.6)(D, D) * sc),
        "wv": _w((lambda *s: torch.randn(*s, dtype=torch.bfloat16) * 0.2)(D, D) * sc),
        "w_out": _w((lambda *s: torch.randn(*s, dtype=torch.bfloat16) * 0.2)(D, D) * sc),
    }

def reference(x, src, dst, deg_inv, w_msg, wq, wk, wv, w_out):
    N, D = x.shape[0], x.shape[1]
    h = _layernorm(x, axis=-1)
    m_e = torch.einsum('nd,de->ne', h, w_msg)
    h_local = _segment_sum(m_e[src], dst, N) * deg_inv[:, None]
    q = torch.einsum('nd,de->ne', h, wq)
    k = torch.einsum('nd,de->ne', h, wk)
    v = torch.einsum('nd,de->ne', h, wv)
    logits = torch.einsum('id,jd->ij', q, k) / (float(D) ** 0.5)
    attn = _softmax(logits, axis=-1)
    h_global = torch.einsum('ij,jd->id', attn, v)
    y = torch.einsum('nd,de->ne', h_local + h_global, w_out)
    return x + y
```

```python
import re

class Asm:
    def __init__(self):
        self.lines = []
    def __call__(self, s):
        for ln in s.strip("\n").split("\n"):
            ln = ln.strip()
            if ln:
                self.lines.append(ln)
    def label(self, name):
        self.lines.append(name + ":")
    def text(self):
        out = []
        for ln in self.lines:
            if ln.endswith(":") or ln.startswith("."):
                out.append(ln)
            else:
                out.append("    " + ln)
        return "\n".join(out) + "\n"

def vr(a, n=1):
    return f"v{a}" if n == 1 else f"v[{a}:{a+n-1}]"
def sr(a, n=1):
    return f"s{a}" if n == 1 else f"s[{a}:{a+n-1}]"

_REG = re.compile(r"\b([vsa])(\d+)\b|\b([vsa])\[(\d+):(\d+)\]|\b(vcc|exec|m0)\b")
def regs_of(tok):
    out = set()
    for m in _REG.finditer(tok):
        if m.group(1):
            out.add((m.group(1), int(m.group(2))))
        elif m.group(3):
            for i in range(int(m.group(4)), int(m.group(5)) + 1):
                out.add((m.group(3), i))
        else:
            out.add((m.group(6), 0))
    return out

def split_ops(s):
    ops, depth, cur = [], 0, ""
    for ch in s:
        if ch == "[": depth += 1
        if ch == "]": depth -= 1
        if ch == "," and depth == 0:
            ops.append(cur.strip()); cur = ""
        else:
            cur += ch
    if cur.strip(): ops.append(cur.strip())
    return ops

TRANS = ("v_exp_", "v_log_", "v_rcp_", "v_rsq_", "v_sqrt_", "v_sin_", "v_cos_")

class Ins:
    def __init__(self, ln):
        self.ln = ln
        ln = ln.split(";")[0].strip()
        p = ln.split(None, 1)
        self.op = p[0]
        self.ops = split_ops(p[1]) if len(p) > 1 else []
        op = self.op
        self.mfma = op.startswith("v_mfma")
        self.valu = op.startswith("v_") and not self.mfma
        self.trans = op.startswith(TRANS)
        self.ds = op.startswith("ds_")
        self.vmem = op.startswith(("buffer_", "global_"))
        self.salu = op.startswith("s_")
        self.dpp = "_dpp" in op or "row_" in ln or "quad_perm" in ln
        self.perm = op.startswith("v_permlane")
        self.states = 1
        if op == "s_nop":
            self.states = int(self.ops[0], 0) + 1
        R = [regs_of(o) for o in self.ops]
        self.w, self.r = set(), set()
        self.srcC = set(); self.srcAB = set()
        self.storedata = set()
        if self.mfma:
            self.w = R[0]; self.srcAB = R[1] | R[2]; self.srcC = R[3]; self.r = self.srcAB | self.srcC
            self.passes = 8 if "32x32" in op else 4
        elif self.valu:
            if op.startswith("v_cmpx"):
                self.w = R[0] | {("exec", 0)}; self.r = set().union(*R[1:])
            elif self.perm:
                self.w = R[0] | R[1]; self.r = R[0] | R[1]
            elif op.startswith(("v_add_co", "v_sub_co", "v_addc_co", "v_subb_co")):
                self.w = R[0] | R[1]; self.r = set().union(*R[2:])
            else:
                self.w = R[0]; self.r = set().union(*R[1:]) if len(R) > 1 else set()
                if op.startswith(("v_fmac", "v_dot2c", "v_writelane")) or self.dpp or "UNUSED_PRESERVE" in ln:
                    self.r |= R[0]
        elif self.ds:
            if op.startswith(("ds_read", "ds_bpermute", "ds_permute", "ds_swizzle")) or "_rtn" in op:
                self.w = R[0]; self.r = set().union(*R[1:])
            else:
                self.r = set().union(*R)
        elif self.vmem:
            if " lds" in ln or op.startswith(("global_load_lds", "buffer_wbl2", "buffer_inv")):
                self.r = (set().union(*R) if R else set()) | {("m0", 0)}
            elif "load" in op:
                self.w = R[0]; self.r = set().union(*R[1:])
            else:
                self.r = set().union(*R)
                if op.startswith("buffer_store") and ("x4" in op or "x3" in op): self.storedata = R[0]
                if op.startswith("global_store") and ("x4" in op or "x3" in op): self.storedata = R[1]
                if "atomic" in op and "sc0" in ln: self.w = R[0]
        elif self.salu:
            if op.startswith(("s_cmp", "s_waitcnt", "s_barrier", "s_nop", "s_branch", "s_cbranch", "s_endpgm", "s_setprio", "s_sleep", "s_bitcmp")):
                self.r = set().union(*R) if R else set()
            else:
                self.w = R[0] if R else set(); self.r = set().union(*R[1:]) if len(R) > 1 else set()
                if "saveexec" in op: self.w = self.w | {("exec", 0)}

def isv(x): return x[0] in ("v", "a")
def iss(x): return x[0] in ("s", "vcc")

def need(a, b):
    n = 0
    vw = {x for x in a.w if isv(x)}
    sw = {x for x in a.w if iss(x)}
    if a.mfma:
        P = a.passes
        if b.mfma:
            if vw & b.srcAB: n = max(n, {4: 8, 8: 12}[P])
            if vw & b.srcC and (a.w != b.srcC or a.passes != b.passes): n = max(n, {4: 6, 8: 10}[P])
        elif (b.valu or b.ds or b.vmem) and (vw & (b.r | b.w)):
            n = max(n, {4: 8, 8: 12}[P])
        if b.valu and (a.srcC & b.w): n = max(n, {4: 3, 8: 7}[P])
    if a.valu:
        if b.mfma and (vw & b.r): n = max(n, 2)
        if b.mfma and ("exec", 0) in a.w: n = max(n, 4)
        if a.trans and b.valu and not b.trans and (vw & b.r): n = max(n, 1)
        if b.perm and (vw & b.r): n = max(n, 2)
        if b.dpp and b.valu and (vw & b.r): n = max(n, 2)
        if b.op.startswith(("v_readlane", "v_readfirstlane")) and (vw & b.r): n = max(n, 1)
        if b.valu and (sw & b.r): n = max(n, 4 if b.op.startswith(("v_readlane", "v_writelane")) else 2)
        if b.vmem and (sw & b.r): n = max(n, 5)
        if ("exec", 0) in a.w:
            if b.dpp: n = max(n, 5)
            if b.perm or b.op.startswith(("v_readlane", "v_readfirstlane", "v_writelane")): n = max(n, 4)
        if ("sdwa" in a.op or "op_sel" in a.ln and not a.op.startswith(("v_pk", "v_fma_mix_f32"))) and b.valu and (vw & (b.r | b.w)): n = max(n, 1)
        if a.op.startswith("v_dot") and (b.valu or b.mfma) and (vw & (b.r | b.w)) and a.op != b.op: n = max(n, 3)
    if a.storedata and (a.storedata & b.w): n = max(n, 2)
    if a.salu and ("m0", 0) in a.w and b.vmem and ("m0", 0) in b.r: n = max(n, 1)
    return n

def check(lines, name=""):
    ins, labels = [], {}
    for ln in lines:
        if ln.endswith(":"):
            labels[ln[:-1]] = len(ins)
        elif ln.startswith(".") or ln.startswith(";"):
            continue
        else:
            ins.append(Ins(ln))
    bad = 0
    def succ(i):
        a = ins[i]
        if a.op == "s_endpgm": return []
        if a.op == "s_branch": return [labels[a.ops[0]]]
        if a.op.startswith("s_cbranch"): return [i + 1, labels[a.ops[0]]]
        return [i + 1]
    for i, a in enumerate(ins):
        if not (a.mfma or a.valu or a.storedata or (a.salu and ("m0", 0) in a.w)): continue
        seen = {}
        stack = [(j, 0) for j in succ(i)]
        while stack:
            j, d = stack.pop()
            if j >= len(ins) or d >= 13 or seen.get(j, 99) <= d: continue
            seen[j] = d
            b = ins[j]
            n = need(a, b)
            if n > d:
                print(f"HAZARD[{name}] need {n} have {d}: '{a.ln}' -> '{b.ln}'")
                bad += 1
            for k in succ(j):
                stack.append((k, d + b.states))
    return bad
```

```python
import sys
sys.path.insert(0, "gen")
from dsl import *

NAME = "gather_scatter__hybrid_graph_tf_graphgps__graph"
N = 10000
WS_KV   = 0x000000
WS_Q    = 0x140000
WS_H16  = 0x280000
WS_W    = 0x3B9000
WS_OFFS = 0x3C0000
WS_ENT  = 0x400000
WS_AGG  = 0x680000
WS_PART = 0x900000
LOG2E_8 = 0x3e38aa3b

def interleave(main, fill, per):
    out, k = [], 0
    for m in main:
        out.append(m)
        out += fill[k:k+per]; k += per
    out += fill[k:]
    return out

def load_args(a):
    a("""
    s_load_dwordx16 s[8:23], s[0:1], 0
    s_load_dwordx8 s[24:31], s[0:1], 64
    """)
X, SRC, DST, DEG, WM, WQ, WK, WV, WO, OUT, DBG, WS = [f"s[{8+2*i}:{9+2*i}]" for i in range(12)]

def srd(a, d, lo, hi, off, nrec, stride=0):
    if off:
        a(f"s_add_u32 s{d}, s{lo}, {off:#x}")
        a(f"s_addc_u32 s{d+1}, s{hi}, 0")
    else:
        a(f"s_mov_b32 s{d}, s{lo}")
        a(f"s_mov_b32 s{d+1}, s{hi}")
    if stride:
        a(f"s_or_b32 s{d+1}, s{d+1}, {stride << 16:#x}")
    a(f"s_mov_b32 s{d+2}, {nrec:#x}")
    a(f"s_mov_b32 s{d+3}, 0x20000")

def mfma(d, A, B, C=None):
    c = "0" if C == 0 and C is not None and not isinstance(C, str) else vr(d if C is None else int(C), 16)
    return f"v_mfma_f32_32x32x16_bf16 {vr(d,16)}, {vr(A,4)}, {vr(B,4)}, {c}"

def pi_calc(a, dst, n, t):
    a(f"""
    v_and_b32 v{dst}, 0x13, v{n}
    v_and_b32 v{t}, 4, v{n}
    v_lshl_or_b32 v{dst}, v{t}, 1, v{dst}
    v_and_b32 v{t}, 8, v{n}
    v_lshrrev_b32 v{t}, 1, v{t}
    v_or_b32 v{dst}, v{dst}, v{t}
    """)

K1_NODE_WGS = 80
K1_BIN0 = 81
K1_GRID = 331
K1_LDS = 15360

def k1():
    a = Asm()
    load_args(a)
    a(f"""
    s_cmp_ge_u32 s2, {K1_GRID}
    s_cbranch_scc1 K1_END
    s_cmp_ge_u32 s2, {K1_BIN0}
    s_cbranch_scc1 K1_BIN
    v_and_b32 v1, 31, v0                 ; n
    v_bfe_u32 v2, v0, 5, 1               ; h
    """)
    pi_calc(a, 3, 1, 4)
    a(f"""
    s_cmp_eq_u32 s2, {K1_NODE_WGS}
    s_cbranch_scc1 K1_WGT
    """)
    XR = 16
    F = 32
    WQF = 64
    WKF = 96
    W63 = 128
    M = 144
    HB = 208
    H16 = 224
    a(f"""
    v_lshrrev_b32 v5, 6, v0              ; wave
    s_lshl_b32 s3, s2, 7
    v_lshl_add_u32 v5, v5, 5, v1         ; 32*wave + n
    v_add_u32 v5, s3, v5                 ; row
    v_lshlrev_b32 v6, 4, v2              ; h*16
    v_lshl_add_u32 v7, v5, 7, v6
    v_lshl_add_u32 v8, v3, 7, v6
    v_add_u32 v9, 4096, v8
    v_add_u32 v10, {63*128}, v6
    s_waitcnt lgkmcnt(0)
    """)
    srd(a, 32, 8, 9, 0, N*128)
    for s in range(4):
        a(f"buffer_load_dwordx4 {vr(XR+4*s,4)}, v7, s[32:35], 0 offen offset:{32*s}")
    for s in range(4):
        a(f"global_load_dwordx4 {vr(WQF+4*s,4)}, v8, {WQ} offset:{32*s}")
    for s in range(4):
        a(f"global_load_dwordx4 {vr(W63+4*s,4)}, v10, {WK} offset:{32*s}")
    for s in range(4):
        a(f"global_load_dwordx4 {vr(WKF+16+4*s,4)}, v9, {WK} offset:{32*s}")
    for s in range(4):
        a(f"global_load_dwordx4 {vr(WKF+4*s,4)}, v8, {WK} offset:{32*s}")
    for s in range(4):
        a(f"global_load_dwordx4 {vr(WQF+16+4*s,4)}, v9, {WQ} offset:{32*s}")
    srd(a, 36, 30, 31, WS_H16, N*128)
    a(f"""
    s_add_u32 s40, s30, {WS_Q:#x}
    s_addc_u32 s41, s31, 0
    v_lshrrev_b32 v11, 5, v5             ; tile
    v_lshlrev_b32 v11, 12, v11           ; tile*4096
    v_and_b32 v12, 63, v0
    v_lshl_add_u32 v12, v12, 4, v11
    v_lshlrev_b32 v13, 2, v2             ; 4h
    v_xor_b32 v13, v13, v1               ; n ^ 4h
    v_lshl_add_u32 v13, v13, 4, v11
    v_lshl_add_u32 v13, v2, 9, v13       ; + h*512   (s even)
    v_xor_b32 v14, 128, v13              ; s odd
    s_mov_b32 s42, 0xffff0000
    s_mov_b32 s43, 0x80008000
    s_waitcnt vmcnt(20)
    """)
    for k in range(16):
        a(f"v_lshlrev_b32 v{F+2*k}, 16, v{XR+k}")
        a(f"v_and_b32 v{F+2*k+1}, s42, v{XR+k}")
    a("s_waitcnt vmcnt(12)")
    for k in range(16):
        a(f"v_xor_b32 v{W63+k}, s43, v{W63+k}")
    T = 16
    ln = []
    for c in range(4):
        ln.append(f"v_pk_add_f32 {vr(T+2*c,2)}, {vr(F+2*c,2)}, {vr(F+8+2*c,2)}")
    for r in (2, 3):
        for c in range(4):
            ln.append(f"v_pk_add_f32 {vr(T+2*c,2)}, {vr(T+2*c,2)}, {vr(F+8*r+2*c,2)}")
    ln += [f"v_pk_add_f32 {vr(T,2)}, {vr(T,2)}, {vr(T+2,2)}",
           f"v_pk_add_f32 {vr(T+4,2)}, {vr(T+4,2)}, {vr(T+6,2)}",
           f"v_pk_add_f32 {vr(T,2)}, {vr(T,2)}, {vr(T+4,2)}",
           f"v_add_f32 v{T}, v{T}, v{T+1}",
           f"v_mov_b32 v{T+1}, v{T}",
           "s_nop 1",
           f"v_permlane32_swap_b32 v{T}, v{T+1}",
           f"v_add_f32 v{T}, v{T}, v{T+1}",
           f"v_mul_f32 v{T}, 0xbc800000, v{T}",
           ]
    for k in range(16):
        ln.append(f"v_pk_add_f32 {vr(F+2*k,2)}, {vr(F+2*k,2)}, {vr(T,2)} op_sel_hi:[1,0]")
    for c in range(4):
        ln.append(f"v_pk_mul_f32 {vr(T+2+2*c,2)}, {vr(F+2*c,2)}, {vr(F+2*c,2)}")
    for r in (1, 2, 3):
        for c in range(4):
            ln.append(f"v_pk_fma_f32 {vr(T+2+2*c,2)}, {vr(F+8*r+2*c,2)}, {vr(F+8*r+2*c,2)}, {vr(T+2+2*c,2)}")
    ln += [f"v_pk_add_f32 {vr(T+2,2)}, {vr(T+2,2)}, {vr(T+4,2)}",
           f"v_pk_add_f32 {vr(T+6,2)}, {vr(T+6,2)}, {vr(T+8,2)}",
           f"v_pk_add_f32 {vr(T+2,2)}, {vr(T+2,2)}, {vr(T+6,2)}",
           f"v_add_f32 v{T}, v{T+2}, v{T+3}",
           f"v_mov_b32 v{T+1}, v{T}",
           f"v_mov_b32 v{T+2}, 0x3727c5ac",
           "s_nop 0",
           f"v_permlane32_swap_b32 v{T}, v{T+1}",
           f"v_add_f32 v{T}, v{T}, v{T+1}",
           f"v_fmac_f32 v{T+2}, 0x3c800000, v{T}",
           f"v_rsq_f32 v{T}, v{T+2}",
           "s_nop 0",
           ]
    for k in range(16):
        ln.append(f"v_pk_mul_f32 {vr(F+2*k,2)}, {vr(F+2*k,2)}, {vr(T,2)} op_sel_hi:[1,0]")
    for k in range(16):
        ln.append(f"v_cvt_pk_bf16_f32 v{HB+k}, v{F+2*k}, v{F+2*k+1}")
    for k in range(16):
        ln.append(f"v_cvt_pk_f16_f32 v{H16+k}, v{F+2*k}, v{F+2*k+1}")
    mm = []
    for A in range(2):
        m0, m1 = M + 32*A, M + 32*A + 16
        if A == 1: mm.append("s_waitcnt vmcnt(0)")
        for s in range(4):
            mm.append(mfma(m0, WQF+16*A+4*s, W63+4*s, 0 if s == 0 else None))
        if A == 0: mm.append("s_waitcnt vmcnt(8)")
        for s in range(4):
            mm.append(mfma(m1, WQF+16*A+4*s, WKF+16+4*s, str(m0) if s == 0 else None))
        if A == 0: mm.append("s_waitcnt vmcnt(4)")
        for s in range(4):
            mm.append(mfma(m0, WQF+16*A+4*s, WKF+4*s))
    a("s_nop 0")
    for x in interleave(mm, ln, 4): a(x)
    a(f"""
    v_cmp_gt_u32 vcc, {N}, v5
    v_and_b32 v{T+3}, 0xffff, v{HB+15}
    v_mov_b32 v{T}, v{HB+12}
    v_cndmask_b32 v4, 0, v2, vcc
    v_or_b32 v{T+3}, 0x3f800000, v{T+3}
    v_cmp_eq_u32 vcc, 1, v4
    v_mov_b32 v{T+1}, v{HB+13}
    v_mov_b32 v{T+2}, v{HB+14}
    v_cndmask_b32 v{T+3}, v{HB+15}, v{T+3}, vcc
    """)
    for s in range(4):
        src = HB+4*s if s < 3 else T
        a(f"global_store_dwordx4 v{13 + (s&1)}, {vr(src,4)}, {WS} offset:{1024*s}")
    for s in range(4):
        a(f"buffer_store_dwordx4 {vr(H16+4*s,4)}, v7, s[36:39], 0 offen offset:{32*s}")
    MF = F
    for b in (1, 0):
        for A in range(2):
            m = M + 32*A + 16*b
            for k in range(8):
                a(f"v_cvt_pk_bf16_f32 v{MF+16*b+8*A+k}, v{m+2*k}, v{m+2*k+1}")
    QO = WQF
    a("s_nop 0")
    for s in range(4):
        for b in (1, 0):
            a(mfma(QO+16*b, MF+16*b+4*s, HB+4*s, 0 if s == 0 else None))
    a(f"s_mov_b32 s44, {LOG2E_8:#x}")
    a(f"v_mov_b32 v{T+4}, s44")
    a("s_nop 8")
    QP = WKF
    for b in (1, 0):
        for k in range(8):
            a(f"v_pk_mul_f32 {vr(QO+16*b+2*k,2)}, {vr(QO+16*b+2*k,2)}, {vr(T+4,2)} op_sel_hi:[1,0]")
        for k in range(8):
            a(f"v_cvt_pk_bf16_f32 v{QP+8*b+k}, v{QO+16*b+2*k}, v{QO+16*b+2*k+1}")
        for s2 in range(2):
            s = 2*b + s2
            a(f"global_store_dwordx4 v12, {vr(QP+4*s,4)}, s[40:41] offset:{1024*s}")
    a("s_endpgm")

    a.label("K1_WGT")
    AF = 16
    A63 = 48
    BF = 64
    D = 80
    a(f"""
    v_lshrrev_b32 v5, 6, v0
    s_nop 0
    v_readfirstlane_b32 s3, v5           ; wave
    v_lshlrev_b32 v6, 4, v2              ; h*16
    s_waitcnt lgkmcnt(0)
    s_cmp_ge_u32 s3, 2
    s_cselect_b32 s32, s22, s16
    s_cselect_b32 s33, s23, s17
    s_cselect_b32 s34, -1, 0
    s_cselect_b64 vcc, -1, 0
    s_and_b32 s35, s3, 1                 ; b
    v_cndmask_b32 v7, v3, v1, vcc
    v_lshl_add_u32 v7, v7, 7, v6
    v_add_u32 v8, 4096, v7
    v_add_u32 v9, {63*128}, v6
    s_lshl_b32 s36, s35, 6               ; b*32*2 bytes
    v_lshlrev_b32 v10, 10, v2            ; h*8 rows * 128
    v_lshl_add_u32 v10, v3, 1, v10
    v_add_u32 v10, s36, v10
    v_add_u32 v11, 4096, v10             ; s=2,3
    """)
    for A in range(2):
        for s in range(4):
            a(f"global_load_dwordx4 {vr(AF+16*A+4*s,4)}, v{7+A}, s[32:33] offset:{32*s}")
    for s in range(4):
        a(f"global_load_dwordx4 {vr(A63+4*s,4)}, v9, s[32:33] offset:{32*s}")
    for s in range(4):
        for j in range(8):
            a(f"global_load_ushort v{112+8*s+j}, v{10+s//2}, {WO} offset:{(s&1)*2048 + j*128}")
    a(f"""
    s_mov_b32 s37, 0x80008000
    s_lshl_b32 s38, s3, 12
    s_add_u32 s38, s38, {WS_W:#x}
    s_add_u32 s40, s30, s38
    s_addc_u32 s41, s31, 0
    v_and_b32 v12, 63, v0
    v_lshlrev_b32 v12, 4, v12
    s_waitcnt vmcnt(0)
    """)
    for k in range(16):
        a(f"v_xor_b32 v{A63+k}, s37, v{A63+k}")
        a(f"v_and_b32 v{A63+k}, s34, v{A63+k}")
        a(f"v_lshl_or_b32 v{BF+k}, v{113+2*k}, 16, v{112+2*k}")
    a("s_nop 1")
    for s in range(4):
        a(mfma(D, A63+4*s, BF+4*s, 0 if s == 0 else None))
    for s in range(4):
        a(mfma(D+16, AF+16+4*s, BF+4*s, str(D) if s == 0 else None))
    for s in range(4):
        a(mfma(D, AF+4*s, BF+4*s))
    a("s_nop 11")
    for k in range(16):
        a(f"v_cvt_pk_bf16_f32 v{AF+k}, v{D+2*k}, v{D+2*k+1}")
    for s in range(4):
        a(f"global_store_dwordx4 v12, {vr(AF+4*s,4)}, s[40:41] offset:{1024*s}")
    a("s_endpgm")

    a.label("K1_BIN")
    DV, SV, AV, RV = 16, 28, 40, 52
    a(f"""
    s_sub_u32 s3, s2, {K1_BIN0}          ; producer p
    s_mul_i32 s4, s3, 10240
    v_lshlrev_b32 v1, 4, v0              ; t*16
    v_lshlrev_b32 v2, 3, v0              ; t*8
    v_add_u32 v3, s4, v1
    v_add_u32 v4, 4096, v3
    v_add_u32 v5, s4, v2
    v_add_u32 v5, 8192, v5
    v_lshlrev_b32 v6, 2, v0
    v_mov_b32 v7, 0
    ds_write_b32 v6, v7
    s_waitcnt lgkmcnt(0)
    global_load_dwordx4 {vr(DV,4)}, v3, {DST}
    global_load_dwordx4 {vr(DV+4,4)}, v4, {DST}
    global_load_dwordx2 {vr(DV+8,2)}, v5, {DST}
    global_load_dwordx4 {vr(SV,4)}, v3, {SRC}
    global_load_dwordx4 {vr(SV+4,4)}, v4, {SRC}
    global_load_dwordx2 {vr(SV+8,2)}, v5, {SRC}
    s_add_u32 s32, s30, {WS_ENT:#x}
    s_addc_u32 s33, s31, 0
    s_lshl_b32 s5, s3, 10
    s_add_u32 s5, s5, {WS_OFFS:#x}
    s_add_u32 s34, s30, s5
    s_addc_u32 s35, s31, 0
    v_mov_b32 v8, 4
    v_and_b32 v9, 63, v0
    v_lshlrev_b32 v9, 4, v9              ; lane*16
    v_lshrrev_b32 v10, 6, v0
    v_lshlrev_b32 v10, 10, v10           ; wave*1024
    v_add_u32 v11, v9, v10
    s_barrier
    s_waitcnt vmcnt(3)
    """)
    for k in range(10):
        a(f"v_mul_u32_u24 v{AV+k}, 52429, v{DV+k}")
        a(f"v_lshrrev_b32 v{AV+k}, 19, v{AV+k}")
        a(f"v_and_b32 v{AV+k}, 0x3fc, v{AV+k}")
        a(f"ds_add_rtn_u32 v{RV+k}, v{AV+k}, v8")
    a("s_waitcnt vmcnt(0)")
    for k in range(10):
        a(f"v_mad_i32_i24 v{DV+k}, v{AV+k}, -10, v{DV+k}")
        a(f"v_lshl_or_b32 v{SV+k}, v{DV+k}, 18, v{SV+k}")
        a(f"v_add_u32 v{AV+k}, v{AV+k}, v10")
    a(f"""
    s_waitcnt lgkmcnt(0)
    s_barrier
    ds_read_b128 v[64:67], v9
    s_waitcnt lgkmcnt(0)
    v_add_u32 v69, v64, v65
    v_add_u32 v70, v69, v66
    v_add_u32 v72, v70, v67
    v_mov_b32 v73, v72
    s_nop 1
    v_add_u32_dpp v73, v73, v73 row_shr:1 row_mask:0xf bank_mask:0xf bound_ctrl:0
    s_nop 1
    v_add_u32_dpp v73, v73, v73 row_shr:2 row_mask:0xf bank_mask:0xf bound_ctrl:0
    s_nop 1
    v_add_u32_dpp v73, v73, v73 row_shr:4 row_mask:0xf bank_mask:0xf bound_ctrl:0
    s_nop 1
    v_add_u32_dpp v73, v73, v73 row_shr:8 row_mask:0xf bank_mask:0xf bound_ctrl:0
    s_nop 1
    v_add_u32_dpp v73, v73, v73 row_bcast:15 row_mask:0xa bank_mask:0xf
    s_nop 1
    v_add_u32_dpp v73, v73, v73 row_bcast:31 row_mask:0xc bank_mask:0xf
    v_sub_u32 v76, v73, v72
    v_add_u32 v77, v76, v64
    v_add_u32 v78, v76, v69
    v_add_u32 v79, v76, v70
    ds_write_b128 v11, v[76:79] offset:1024
    v_lshl_or_b32 v80, v64, 16, v76
    v_lshl_or_b32 v81, v65, 16, v77
    v_lshl_or_b32 v82, v66, 16, v78
    v_lshl_or_b32 v83, v67, 16, v79
    s_waitcnt lgkmcnt(0)
    """)
    for k in range(10):
        a(f"ds_read_b32 v{DV+k}, v{AV+k} offset:1024")
    a(f"""
    v_cmp_gt_u32 vcc, 64, v0
    s_and_saveexec_b64 s[36:37], vcc
    s_cbranch_execz K1_NOTAB
    global_store_dwordx4 v9, v[80:83], s[34:35]
    """)
    a.label("K1_NOTAB")
    a("s_mov_b64 exec, s[36:37]")
    for k in range(10):
        a(f"s_waitcnt lgkmcnt({9})" if k == 0 else f"s_waitcnt lgkmcnt(9)")
        a(f"v_add_u32 v{DV+k}, v{DV+k}, v{RV+k}")
        a(f"ds_write_b32 v{DV+k}, v{SV+k} offset:5120")
    a(f"""
    s_waitcnt lgkmcnt(0)
    s_barrier
    ds_read_b128 v[64:67], v1 offset:5120
    ds_read_b128 v[68:71], v1 offset:{5120+4096}
    ds_read_b64 v[72:73], v2 offset:{5120+8192}
    s_waitcnt lgkmcnt(2)
    global_store_dwordx4 v3, v[64:67], s[32:33]
    s_waitcnt lgkmcnt(1)
    global_store_dwordx4 v4, v[68:71], s[32:33]
    s_waitcnt lgkmcnt(0)
    global_store_dwordx2 v5, v[72:73], s[32:33]
    """)
    a.label("K1_END")
    a("s_endpgm")
    return a, 240

def kernel_block(name, vgpr, sgpr=100):
    acc = (vgpr + 3)//4*4
    return f""".amdhsa_kernel {name}
  .amdhsa_next_free_vgpr {vgpr}
  .amdhsa_next_free_sgpr {sgpr}
  .amdhsa_accum_offset {acc}
  .amdhsa_group_segment_fixed_size 0
  .amdhsa_kernarg_size 96
  .amdhsa_user_sgpr_count 2
  .amdhsa_user_sgpr_kernarg_segment_ptr 1
  .amdhsa_system_sgpr_workgroup_id_x 1
  .amdhsa_float_denorm_mode_32 3
  .amdhsa_float_denorm_mode_16_64 3
.end_amdhsa_kernel
"""

def assemble_file(kernels, path):
    hdr = open(f"cdna_kernels/{NAME}.s.ref").read().split("; Override launch")[0]
    out = hdr
    for (label, a, vg, grid, block, lds) in kernels:
        out += f"; @launch kernel={label} grid=({grid},1,1) block=({block},1,1) lds={lds}\n"
    out += '.amdgcn_target "amdgcn-amd-amdhsa--gfx950"\n.text\n'
    bad = 0
    seen = set()
    for (label, a, vg, grid, block, lds) in kernels:
        if label in seen: continue
        seen.add(label)
        bad += check(a.lines, label)
        out += f".globl {label}\n.p2align 8\n.type {label},@function\n{label}:\n" + a.text()
    out += '.section .rodata,"a"\n'
    seen = set()
    for (label, a, vg, grid, block, lds) in kernels:
        if label in seen: continue
        seen.add(label)
        out += ".p2align 6\n" + kernel_block(label, vg)
    open(path, "w").write(out)
    return bad
```

```python
from gen import *

K2_GRID = 252
K2_LDS = 163840
L_CNT = 131072
L_LIST = 163840 - 20480
CAP = 240

KA, VA, KS, VS = 0, 2, 4, 6
KF, VF = 8, 24
S = [40, 56]
QO, QS = 72, 88
OO, OS = 104, 136

def kread(s, unit):
    u = unit % 10; half, i = divmod(u, 5)
    base = KS if i == 4 else KA
    off = half*32768 + (0 if i == 4 else i*8192) + s*1024
    return f"ds_read_b128 {vr(KF+4*s,4)}, v{base+(s&1)} offset:{off}"

def vread(b, ks, j, unit):
    u = unit % 10; half, i = divmod(u, 5)
    base = VS if i == 4 else VA
    off = half*32768 + (0 if i == 4 else i*8192) + b*2048 + ks*256
    f = VF + 4*(2*ks+b) + 2*j
    return f"ds_read_b64_tr_b16 {vr(f,2)}, v{base+j} offset:{off}"

def qk(s, unit):
    q = QS if unit % 5 == 4 else QO
    return mfma(S[unit & 1], KF+4*s, q+4*s, 0 if s == 0 else None)

def pv(b, ks, unit):
    o = OS if unit % 5 == 4 else OO
    return mfma(o+16*b, VF+4*(2*ks+b), S[unit & 1]+8*ks)

def ex(unit, r):
    return f"v_exp_f32 v{S[unit&1]+r}, v{S[unit&1]+r}"
def cv(unit, p):
    s = S[unit & 1]
    return f"v_cvt_pk_bf16_f32 v{s+(p&3)+8*(p>>2)}, v{s+2*p}, v{s+2*p+1}"

def unit_code(u, extra=None):
    extra = extra or {}
    out = []
    for g in range(8):
        if g == 0: out.append("s_waitcnt lgkmcnt(8)")
        if g == 4: out.append("s_waitcnt lgkmcnt(4)")
        if g < 4:
            out.append(qk(g, u+1))
            rd = [kread(g, u+2)]
        else:
            b, ks = (g-4) & 1, (g-4) >> 1
            out.append(pv(b, ks, u))
            rd = [vread(b, ks, 0, u+1), vread(b, ks, 1, u+1)]
        if g < 5:   eu, ep = u, g+3
        else:       eu, ep = u+1, g-5
        if g < 6:   cu, cp = u, g+2
        else:       cu, cp = u+1, g-6
        out.append(cv(cu, cp))
        out.append(rd[0])
        out.append(ex(eu, 2*ep))
        out += rd[1:]
        out.append(ex(eu, 2*ep+1))
        out += extra.get(g, [])
    return out

def k2():
    a = Asm()
    a(f"""
    s_load_dwordx2 s[4:5], s[0:1], 88
    v_lshrrev_b32 v1, 6, v0
    s_cmp_ge_u32 s2, {K2_GRID}
    s_cbranch_scc1 K2_END
    v_readfirstlane_b32 s6, v1           ; wave
    v_and_b32 v0, 63, v0                 ; lane
    s_lshr_b32 s7, s2, 2                 ; qb
    s_and_b32 s8, s2, 3                  ; split
    s_cmp_ge_u32 s6, 8
    s_cbranch_scc1 K2_HELP
    """)
    a(f"""
    s_and_b32 s9, s6, 3                  ; j
    s_lshr_b32 s14, s6, 2                ; parity
    s_mul_i32 s15, s7, 5
    s_add_u32 s16, s15, s9
    s_lshl_b32 s16, s16, 12
    s_add_u32 s16, s16, {WS_Q:#x}
    s_lshl_b32 s17, s15, 12
    s_add_u32 s17, s17, {WS_Q + 4*4096:#x}
    v_lshlrev_b32 v40, 4, v0             ; lane*16
    s_waitcnt lgkmcnt(0)
    s_add_u32 s10, s4, s16
    s_addc_u32 s11, s5, 0
    s_add_u32 s12, s4, s17
    s_addc_u32 s13, s5, 0
    """)
    for s in range(4):
        a(f"global_load_dwordx4 {vr(QO+4*s,4)}, v40, s[10:11] offset:{1024*s}")
    for s in range(4):
        a(f"global_load_dwordx4 {vr(QS+4*s,4)}, v40, s[12:13] offset:{1024*s}")
    a(f"""
    s_lshl_b32 s18, s14, 12              ; par*4096
    s_lshl_b32 s19, s9, 13               ; j*8192
    v_and_b32 v41, 31, v0                ; n
    v_lshrrev_b32 v42, 5, v0             ; h
    v_lshlrev_b32 v43, 2, v42
    v_xor_b32 v43, v43, v41              ; n ^ 4h
    v_lshlrev_b32 v43, 4, v43
    v_lshl_add_u32 v43, v42, 9, v43
    v_bfe_u32 v44, v0, 4, 1              ; G&1
    v_bfe_u32 v45, v0, 1, 1              ; cc>>1
    v_lshl_or_b32 v44, v44, 1, v45       ; c3
    v_bfe_u32 v45, v0, 2, 2              ; r
    v_lshl_or_b32 v45, v42, 2, v45       ; key0 = 4h + r
    v_lshlrev_b32 v46, 2, v44
    v_xor_b32 v45, v45, v46
    v_lshlrev_b32 v45, 4, v45
    v_lshl_add_u32 v45, v44, 9, v45
    v_and_b32 v46, 1, v0
    v_lshl_add_u32 v45, v46, 3, v45
    v_add_u32 v{KA}, s18, v43
    v_add_u32 v{VA}, s18, v45
    v_xor_b32 v{KA+1}, 128, v{KA}
    v_xor_b32 v{VA+1}, 128, v{VA}
    v_add_u32 v{KS}, s19, v{KA}
    v_add_u32 v{KS+1}, s19, v{KA+1}
    v_add_u32 v{VS}, s19, v{VA}
    v_add_u32 v{VS+1}, s19, v{VA+1}
    """)
    for r in range(64):
        a(f"v_mov_b32 v{OO+r}, 0")
    a("s_mov_b32 s20, 5")
    a("s_barrier")
    for s in range(4): a(kread(s, 0))
    a("s_waitcnt vmcnt(0) lgkmcnt(0)")
    for s in range(4):
        a(qk(s, 0)); a(kread(s, 1))
    for ks in range(2):
        for b in range(2):
            a(vread(b, ks, 0, 0)); a(vread(b, ks, 1, 0))
    a("s_nop 3")
    for r in range(6): a(ex(0, r))
    a(cv(0, 0)); a(cv(0, 1))
    a(".p2align 6")
    a.label("K2_LOOP")
    for u in range(10):
        extra = {}
        if u == 7:
            extra = {4: [f"v_xor_b32 v{KA}, 0x10000, v{KA}"], 5: [f"v_xor_b32 v{KA+1}, 0x10000, v{KA+1}"],
                     6: [f"v_xor_b32 v{KS}, 0x10000, v{KS}"], 7: [f"v_xor_b32 v{KS+1}, 0x10000, v{KS+1}"]}
        if u == 9:
            extra = {0: [f"v_xor_b32 v{VA}, 0x10000, v{VA}"], 1: [f"v_xor_b32 v{VA+1}, 0x10000, v{VA+1}"],
                     2: [f"v_xor_b32 v{VS}, 0x10000, v{VS}"], 3: [f"v_xor_b32 v{VS+1}, 0x10000, v{VS+1}"],
                     5: ["s_sub_u32 s20, s20, 1"], 6: ["s_cmp_lg_u32 s20, 0"]}
        if u % 5 == 3: a("s_barrier")
        for x in unit_code(u, extra): a(x)
    a("s_cbranch_scc1 K2_LOOP")
    a(f"""
    v_mbcnt_lo_u32_b32 v0, -1, 0
    v_mbcnt_hi_u32_b32 v0, -1, v0
    s_lshl_b32 s21, s6, 12               ; w*4096
    s_lshl_b32 s22, s6, 13               ; w*8192
    s_add_u32 s22, s22, 65536
    s_xor_b32 s23, s21, {4*4096}
    s_lshl_b32 s24, s6, 10
    s_add_u32 s24, s24, 65536
    v_lshlrev_b32 v0, 4, v0              ; lane*16
    v_add_u32 v1, s21, v0
    v_add_u32 v2, s22, v0
    v_add_u32 v3, s23, v0
    v_add_u32 v4, s24, v0
    s_mul_i32 s25, s2, {5*8192}
    s_lshl_b32 s26, s9, 13
    s_add_u32 s26, s26, s18              ; j*8192 + par*4096
    s_add_u32 s26, s26, s25
    s_add_u32 s26, s26, {WS_PART:#x}
    s_add_u32 s28, s4, s26
    s_addc_u32 s29, s5, 0
    s_lshl_b32 s27, s6, 10
    s_add_u32 s27, s27, s25
    s_add_u32 s27, s27, {WS_PART + 4*8192:#x}
    s_add_u32 s30, s4, s27
    s_addc_u32 s31, s5, 0
    s_waitcnt lgkmcnt(0)
    s_cmp_eq_u32 s14, 0
    s_cbranch_scc1 K2_EP0
    """)
    for q in range(4): a(f"ds_write_b128 v1, {vr(OO+4*q,4)} offset:{1024*q}")
    for q in range(16): a(f"v_mov_b32 v{KF+q}, v{OO+16+q}")
    a("s_branch K2_EP1")
    a.label("K2_EP0")
    for q in range(4): a(f"ds_write_b128 v1, {vr(OO+16+4*q,4)} offset:{1024*q}")
    for q in range(16): a(f"v_mov_b32 v{KF+q}, v{OO+q}")
    a.label("K2_EP1")
    for q in range(8): a(f"ds_write_b128 v2, {vr(OS+4*q,4)} offset:{1024*q}")
    a("s_waitcnt lgkmcnt(0)")
    a("s_barrier")
    for q in range(4): a(f"ds_read_b128 {vr(40+4*q,4)}, v3 offset:{1024*q}")
    for w in range(8): a(f"ds_read_b128 {vr(72+4*w,4)}, v4 offset:{8192*w}")
    for q in range(4):
        a(f"s_waitcnt lgkmcnt({11-q})")
        a(f"v_pk_add_f32 {vr(KF+4*q,2)}, {vr(KF+4*q,2)}, {vr(40+4*q,2)}")
        a(f"v_pk_add_f32 {vr(KF+4*q+2,2)}, {vr(KF+4*q+2,2)}, {vr(42+4*q,2)}")
        a(f"global_store_dwordx4 v0, {vr(KF+4*q,4)}, s[28:29] offset:{1024*q}")
    a("s_waitcnt lgkmcnt(0)")
    for st in (4, 8, 16):
        for w in range(0, 32, 2*st):
            a(f"v_pk_add_f32 {vr(72+w,2)}, {vr(72+w,2)}, {vr(72+w+st,2)}")
            a(f"v_pk_add_f32 {vr(74+w,2)}, {vr(74+w,2)}, {vr(74+w+st,2)}")
    a(f"global_store_dwordx4 v0, {vr(72,4)}, s[30:31]")
    a("s_endpgm")

    a.label("K2_HELP")
    EN = 16
    AD = 40
    PR = 64
    DT = 84
    a(f"""
    s_sub_u32 s9, s6, 8                  ; hw
    v_lshlrev_b32 v1, 4, v0              ; lane*16
    s_mul_i32 s14, s8, {80*4096}
    s_lshl_b32 s15, s9, 13               ; hw*8192
    s_add_u32 s14, s14, s15
    s_lshl_b32 s16, s9, 6
    v_add_u32 v2, s16, v0                ; producer p
    s_lshl_b32 s17, s2, 2
    v_lshl_add_u32 v3, v2, 10, s17       ; p*1024 + b*4
    s_waitcnt lgkmcnt(0)
    """)
    srd(a, 32, 4, 5, WS_KV, 320*4096)
    def dma(a):
        a(f"s_mov_b32 m0, s15")
        a(f"s_add_u32 s18, s14, 4096")
        for k in range(4): a(f"buffer_load_dwordx4 v1, s[32:35], s14 offen offset:{1024*k} lds")
        a(f"s_add_u32 m0, s15, 4096")
        a(f"s_add_u32 s14, s14, 32768")
        for k in range(4): a(f"buffer_load_dwordx4 v1, s[32:35], s18 offen offset:{1024*k} lds")
        a(f"s_add_u32 s15, s15, 32768")
        a(f"s_and_b32 s15, s15, 0x1ffff")
    dma(a)
    srd(a, 36, 4, 5, WS_OFFS, 250*1024)
    a("buffer_load_dword v4, v3, s[36:39], 0 offen")
    dma(a)
    srd(a, 40, 4, 5, WS_ENT, 250*10240)
    srd(a, 44, 4, 5, WS_H16, N, stride=128)
    srd(a, 48, 4, 5, WS_AGG, N*256)
    a(f"""
    v_mov_b32 v8, -1
    v_mov_b32 v9, -1
    v_mov_b32 v10, -1
    v_mov_b32 v11, -1
    v_lshlrev_b32 v5, 4, v2
    v_add_u32 v5, {L_LIST}, v5
    """)
    for k in range(5): a(f"ds_write_b128 v5, v[8:11] offset:{4096*k}")
    a(f"""
    v_lshlrev_b32 v6, 2, v2
    v_add_u32 v6, {L_CNT}, v6
    v_lshlrev_b32 v7, 9, v2
    v_add_u32 v7, {L_LIST}, v7
    ds_write_b32 v6, v7
    v_mul_u32_u24 v12, 10240, v2         ; p*10240
    v_mov_b32 v13, 2
    v_and_b32 v14, 7, v0
    v_lshlrev_b32 v14, 4, v14            ; (lane&7)*16
    """)
    for k in range(10): a(f"v_mov_b32 v{PR+2*k+1}, v14")
    a(f"""
    s_waitcnt vmcnt(9) lgkmcnt(0)
    s_barrier
    s_waitcnt vmcnt(8)
    v_and_b32 v5, 0xffff, v4
    v_add_u32 v12, v12, v5
    v_lshrrev_b32 v4, 18, v4
    """)
    def entloads(a):
        for k in range(6):
            a(f"v_cmp_lt_i32 vcc, {4*k}, v4")
            a(f"s_and_b64 exec, exec, vcc")
            a(f"buffer_load_dwordx4 {vr(EN+4*k,4)}, v12, s[40:43], 0 offen offset:{16*k}")
        a("s_mov_b64 exec, -1")
    entloads(a)
    dma(a)
    a("s_waitcnt vmcnt(14)")
    a("s_barrier")
    dma(a)
    a("s_waitcnt vmcnt(8)")
    a.label("K2_SORT")
    for g in range(3):
        for k in range(8*g, 8*g+8):
            a(f"v_cmp_lt_i32 vcc, {k}, v4")
            a(f"v_lshrrev_b32 v{AD+k}, 16, v{EN+k}")
            a(f"s_and_b64 exec, exec, vcc")
            a(f"s_mov_b64 s[{52+2*(k&7)}:{53+2*(k&7)}], exec")
            a(f"ds_add_rtn_u32 v{AD+k}, v{AD+k}, v13 offset:{L_CNT & 0xffff}" if False else f"v_add_u32 v{AD+k}, {L_CNT}, v{AD+k}")
            a(f"ds_add_rtn_u32 v{AD+k}, v{AD+k}, v13")
        for k in range(8*g, 8*g+8):
            a(f"s_mov_b64 exec, s[{52+2*(k&7)}:{53+2*(k&7)}]")
            a(f"s_waitcnt lgkmcnt(7)")
            a(f"ds_write_b16 v{AD+k}, v{EN+k}")
        if g < 2: a("s_cbranch_execz K2_SORTED")
    a(f"""
    s_mov_b64 exec, -1
    v_subrev_u32 v4, 24, v4
    v_add_u32 v12, 96, v12
    v_cmp_lt_i32 vcc, 0, v4
    s_cbranch_vccz K2_SORTED
    s_waitcnt lgkmcnt(0)
    """)
    entloads(a)
    a("s_waitcnt vmcnt(0)")
    a("s_branch K2_SORT")
    a.label("K2_SORTED")
    a(f"""
    s_mov_b64 exec, -1
    s_waitcnt lgkmcnt(0)
    s_barrier
    v_lshlrev_b32 v6, 2, v0
    v_add_u32 v6, {L_CNT}, v6
    ds_read_b32 v4, v6
    v_lshlrev_b32 v7, 9, v0
    v_add_u32 v7, {L_LIST}, v7
    s_mul_i32 s21, s9, 10
    s_add_u32 s22, s21, 10               ; end
    s_mov_b32 s23, 2
    v_lshrrev_b32 v15, 3, v0
    v_lshlrev_b32 v15, 1, v15            ; group*2
    v_add_u32 v15, {L_LIST}, v15
    v_and_b32 v5, 7, v0
    v_lshlrev_b32 v5, 5, v5              ; c*32 bytes
    v_lshrrev_b32 v8, 4, v0
    v_lshl_add_u32 v5, v8, 3, v5
    v_and_b32 v8, 8, v0
    v_lshl_add_u32 v5, v8, 28, v5
    s_mul_i32 s24, s2, {40*256}
    s_waitcnt lgkmcnt(0)
    v_sub_u32 v4, v4, v7
    v_cmp_lt_u32 vcc, {2*CAP}, v4
    s_mov_b32 s25, 0
    s_cbranch_vccz K2_PER
    s_mov_b32 s25, 1
    s_mov_b32 s21, s22
    """)
    a.label("K2_PER")
    a(f"""
    s_cmp_ge_u32 s23, 8
    s_cbranch_scc1 K2_NODMA
    """)
    dma(a)
    a.label("K2_NODMA")
    a(f"""
    s_cmp_lt_u32 s23, 4
    s_cselect_b32 s26, 2, 1
    """)
    a.label("K2_NODE")
    a(f"""
    s_cmp_ge_u32 s21, s22
    s_cbranch_scc1 K2_PEREND
    s_lshl_b32 s27, s21, 9
    v_readlane_b32 s28, v4, s21          ; bytes
    v_add_u32 v9, s27, v15
    v_mov_b32 v10, 0
    v_mov_b32 v11, 0
    """)
    a.label("K2_CHUNK")
    for k in range(10): a(f"ds_read_u16 v{PR+2*k}, v9 offset:{16*k}")
    for k in range(10):
        a(f"s_waitcnt lgkmcnt({9-k})")
        a(f"buffer_load_dwordx4 {vr(DT+4*k,4)}, {vr(PR+2*k,2)}, s[44:47], 0 idxen offen")
    for k in range(1, 10):
        a(f"s_waitcnt vmcnt({9-k})")
        for r in range(4): a(f"v_pk_add_f16 v{DT+r}, v{DT+r}, v{DT+4*k+r}")
    a(f"""
    s_sub_i32 s28, s28, 160
    s_nop 0
    v_permlane32_swap_b32 v{DT}, v{DT+2}
    v_permlane32_swap_b32 v{DT+1}, v{DT+3}
    v_pk_add_f16 v{DT}, v{DT}, v{DT+2}
    v_pk_add_f16 v{DT+1}, v{DT+1}, v{DT+3}
    s_nop 1
    v_permlane16_swap_b32 v{DT}, v{DT+1}
    v_pk_add_f16 v{DT}, v{DT}, v{DT+1}
    v_add_u32 v9, 160, v9
    v_fma_mix_f32 v10, v{DT}, 1.0, v10 op_sel:[0,0,0] op_sel_hi:[1,0,0]
    v_fma_mix_f32 v11, v{DT}, 1.0, v11 op_sel:[1,0,0] op_sel_hi:[1,0,0]
    s_cmp_gt_i32 s28, 0
    s_cbranch_scc1 K2_CHUNK
    s_lshl_b32 s27, s21, 8
    s_add_u32 s27, s27, s24
    v_add_f32_dpp v10, v10, v10 row_ror:8 row_mask:0xf bank_mask:0xf
    v_add_f32_dpp v11, v11, v11 row_ror:8 row_mask:0xf bank_mask:0xf
    v_add_u32 v8, s27, v5
    s_add_u32 s21, s21, 1
    s_sub_u32 s26, s26, 1
    buffer_store_dwordx2 v[10:11], v8, s[48:51], 0 offen
    s_cmp_lg_u32 s26, 0
    s_cbranch_scc1 K2_NODE
    """)
    a.label("K2_PEREND")
    a(f"""
    s_waitcnt vmcnt(0)
    s_barrier
    s_add_u32 s23, s23, 1
    s_cmp_lt_u32 s23, 11
    s_cbranch_scc1 K2_PER
    s_cmp_eq_u32 s25, 0
    s_cbranch_scc1 K2_END
    """)
    a(f"""
    s_mul_i32 s21, s9, 10
    s_mul_i32 s22, s9, 2560
    v_lshlrev_b32 v6, 2, v0
    v_add_u32 v6, {L_LIST}, v6
    v_add_u32 v7, s22, v6
    v_mov_b32 v8, 0
    v_lshlrev_b32 v9, 1, v0              ; lane*2
    """)
    for k in range(10): a(f"ds_write_b32 v7, v8 offset:{256*k}")
    srd(a, 44, 4, 5, WS_H16, N*128)
    a(f"""
    s_add_u32 s52, s4, {WS_OFFS:#x}
    s_addc_u32 s53, s5, 0
    s_add_u32 s54, s4, {WS_ENT:#x}
    s_addc_u32 s55, s5, 0
    s_mov_b32 s23, 0                     ; p
    """)
    a.label("K2_SP")
    a(f"""
    s_lshl_b32 s26, s23, 10
    s_add_u32 s26, s26, s17
    s_load_dword s27, s[52:53], s26
    s_mul_i32 s28, s23, 10240
    s_waitcnt lgkmcnt(0)
    s_and_b32 s29, s27, 0xffff
    s_add_u32 s28, s28, s29
    s_lshr_b32 s29, s27, 16
    s_add_u32 s29, s29, s28              ; end
    """)
    a.label("K2_SE")
    a(f"""
    s_cmp_ge_u32 s28, s29
    s_cbranch_scc1 K2_SPN
    s_load_dword s27, s[54:55], s28
    s_add_u32 s28, s28, 4
    s_waitcnt lgkmcnt(0)
    s_lshr_b32 s30, s27, 18
    s_sub_u32 s31, s30, s21
    s_cmp_ge_u32 s31, 10
    s_cbranch_scc1 K2_SE
    s_and_b32 s27, s27, 0xffff
    s_lshl_b32 s27, s27, 7
    v_add_u32 v12, s27, v9
    buffer_load_ushort v10, v12, s[44:47], 0 offen
    s_lshl_b32 s30, s30, 8
    v_add_u32 v11, s30, v6
    ds_read_b32 v13, v11
    s_waitcnt vmcnt(0) lgkmcnt(0)
    v_cvt_f32_f16 v10, v10
    v_add_f32 v10, v10, v13
    ds_write_b32 v11, v10
    s_branch K2_SE
    """)
    a.label("K2_SPN")
    a(f"""
    s_add_u32 s23, s23, 1
    s_cmp_lt_u32 s23, 250
    s_cbranch_scc1 K2_SP
    s_waitcnt lgkmcnt(0)
    s_add_u32 s24, s24, s22
    v_lshlrev_b32 v8, 2, v0
    v_add_u32 v8, s24, v8
    """)
    for k in range(10): a(f"ds_read_b32 v{16+k}, v7 offset:{256*k}")
    a("s_waitcnt lgkmcnt(0)")
    for k in range(10): a(f"buffer_store_dword v{16+k}, v8, s[48:51], 0 offen offset:{256*k}")
    a.label("K2_END")
    a("s_endpgm")
    return a, 168

if __name__ == "__main__":
    a, vg = k2()
    print(assemble_file([("gps_attn_kernel", a, vg, K2_GRID, 768, K2_LDS)], "k2.s"))
```

```python
from gen import *

K3_GRID = 313
K3_LDS = 0

def k3():
    a = Asm()
    load_args(a)
    P, AG, XR, W = 16, 144, 176, 192
    a(f"""
    s_cmp_ge_u32 s2, {K3_GRID}
    s_cbranch_scc1 K3_END
    s_mul_i32 s3, s2, 52429
    s_lshr_b32 s3, s3, 18                ; qb = R/5
    s_mul_i32 s4, s3, 5
    s_sub_u32 s4, s2, s4                 ; blk
    s_mul_i32 s5, s3, {4*5*8192}
    s_lshl_b32 s4, s4, 13
    s_add_u32 s5, s5, s4
    s_add_u32 s5, s5, {WS_PART:#x}
    v_lshlrev_b32 v1, 4, v0              ; lane*16
    v_add_u32 v2, 4096, v1
    v_and_b32 v3, 31, v0
    v_lshrrev_b32 v4, 5, v0              ; h
    s_lshl_b32 s6, s2, 5
    v_add_u32 v3, s6, v3                 ; row
    v_lshlrev_b32 v5, 4, v4
    v_lshl_add_u32 v5, v3, 7, v5         ; row*128 + h*16
    v_lshlrev_b32 v6, 1, v5              ; row*256 + h*32
    v_lshlrev_b32 v7, 1, v3              ; row*2
    s_waitcnt lgkmcnt(0)
    """)
    for s in range(4):
        a(f"s_add_u32 s{32+2*s}, s30, s5")
        a(f"s_addc_u32 s{33+2*s}, s31, 0")
        if s < 3: a(f"s_add_u32 s5, s5, {5*8192}")
    for s in range(4):
        for q in range(8):
            a(f"global_load_dwordx4 {vr(P+32*s+4*q,4)}, v{1+q//4}, s[{32+2*s}:{33+2*s}] offset:{1024*(q&3)}")
    srd(a, 40, 30, 31, WS_AGG, N*256)
    srd(a, 44, 14, 15, 0, N*2)
    srd(a, 48, 8, 9, 0, N*128)
    srd(a, 52, 26, 27, 0, N*128)
    a("buffer_load_ushort v8, v7, s[44:47], 0 offen")
    for s in range(4):
        for k in range(2):
            a(f"buffer_load_dwordx4 {vr(AG+8*s+4*k,4)}, v6, s[40:43], 0 offen offset:{64*s+16*k}")
    a(f"""
    s_add_u32 s56, s30, {WS_W:#x}
    s_addc_u32 s57, s31, 0
    s_add_u32 s58, s30, {WS_W+8192:#x}
    s_addc_u32 s59, s31, 0
    """)
    for m in (1, 0):
        for f in range(8):
            a(f"global_load_dwordx4 {vr(W+32*m+4*f,4)}, v{1+f//4}, s[{56+2*m}:{57+2*m}] offset:{1024*(f&3)}")
    for s in range(4):
        a(f"buffer_load_dwordx4 {vr(XR+4*s,4)}, v5, s[48:51], 0 offen offset:{32*s}")
    a(f"s_waitcnt vmcnt({29+16})")
    for k in range(16): a(f"v_pk_add_f32 {vr(P+2*k,2)}, {vr(P+2*k,2)}, {vr(P+32+2*k,2)}")
    a(f"s_waitcnt vmcnt({29})")
    for k in range(16): a(f"v_pk_add_f32 {vr(P+64+2*k,2)}, {vr(P+64+2*k,2)}, {vr(P+96+2*k,2)}")
    for k in range(15, -1, -1): a(f"v_pk_add_f32 {vr(P+2*k,2)}, {vr(P+2*k,2)}, {vr(P+64+2*k,2)}")
    a(f"""
    v_mov_b32 v10, v{P+31}
    v_mov_b32 v11, v{P+31}
    s_nop 1
    v_permlane32_swap_b32 v10, v11
    v_rcp_f32 v10, v11
    s_nop 0
    """)
    G = P + 32
    for k in range(16): a(f"v_pk_mul_f32 {vr(P+2*k,2)}, {vr(P+2*k,2)}, v[10:11] op_sel_hi:[1,0]")
    for k in range(16): a(f"v_cvt_pk_bf16_f32 v{G+k}, v{P+2*k}, v{P+2*k+1}")
    A = P + 48
    a(f"s_waitcnt vmcnt(20)")
    a("v_lshlrev_b32 v8, 16, v8")
    for k in range(16): a(f"v_pk_mul_f32 {vr(AG+2*k,2)}, {vr(AG+2*k,2)}, v[8:9] op_sel_hi:[1,0]")
    for k in range(16): a(f"v_cvt_pk_bf16_f32 v{A+k}, v{AG+2*k}, v{AG+2*k+1}")
    Y = P + 64
    a(f"s_waitcnt vmcnt(12)")
    for s in range(4):
        for b in range(2):
            a(mfma(Y+16*b, W+32+16*b+4*s, G+4*s, 0 if s == 0 else None))
    a(f"s_waitcnt vmcnt(4)")
    for s in range(4):
        for b in range(2):
            a(mfma(Y+16*b, W+16*b+4*s, A+4*s))
    a("s_mov_b32 s60, 0xffff0000")
    a(f"s_waitcnt vmcnt(0)")
    for k in range(16):
        a(f"v_lshlrev_b32 v{AG+2*k}, 16, v{XR+k}")
        a(f"v_and_b32 v{AG+2*k+1}, s60, v{XR+k}")
    for k in range(16): a(f"v_pk_add_f32 {vr(Y+2*k,2)}, {vr(Y+2*k,2)}, {vr(AG+2*k,2)}")
    for k in range(16): a(f"v_cvt_pk_bf16_f32 v{XR+k}, v{Y+2*k}, v{Y+2*k+1}")
    for s in range(4):
        a(f"buffer_store_dwordx4 {vr(XR+4*s,4)}, v5, s[52:55], 0 offen offset:{32*s}")
    a.label("K3_END")
    a("s_endpgm")
    return a, 256
```

```python
import sys
from gen import *
from k2 import *
from k3 import *
out = sys.argv[1] if len(sys.argv) > 1 else f"cdna_kernels/{NAME}.s"
a1, v1 = k1(); a2, v2 = k2(); a3, v3 = k3()
bad = assemble_file([("gps_prep_kernel", a1, v1, K1_GRID, 256, K1_LDS),
                     ("gps_attn_kernel", a2, v2, K2_GRID, 768, K2_LDS),
                     ("gps_comb_kernel", a3, v3, K3_GRID, 64, K3_LDS)], out)
print("hazards:", bad)
for r in range(313): assert (r*52429)>>18 == r//5
```

```python
from gen import *

K2_GRID = 252
K2_LDS = 163840
L_CNT = 131072
L_LIST = 163840 - 20480
CAP = 240
import os
TS = int(os.environ.get("TS", "0"))
WS_DBG = 0x2000000
def ts_bar(a, helper=False):
    if not TS:
        a("s_barrier"); return
    if helper:
        a("""
        s_memtime s[72:73]
        s_waitcnt lgkmcnt(0)
        s_barrier
        s_memtime s[74:75]
        s_mov_b32 m0, s76
        s_nop 0
        v_writelane_b32 v127, s72, m0
        s_add_u32 s76, s76, 1
        s_waitcnt lgkmcnt(0)
        s_mov_b32 m0, s76
        s_nop 0
        v_writelane_b32 v127, s74, m0
        s_add_u32 s76, s76, 1
        """)
    else:
        a("""
        s_movreld_b32 s64, s60
        s_movreld_b32 s65, s62
        s_add_u32 m0, m0, 2
        s_memtime s[60:61]
        s_barrier
        s_memtime s[62:63]
        """)
def ts_start(a, helper=False):
    if not TS: return
    if helper:
        a("""
        s_memtime s[72:73]
        s_memrealtime s[74:75]
        s_waitcnt lgkmcnt(0)
        v_writelane_b32 v127, s72, 0
        v_writelane_b32 v127, s74, 1
        s_mov_b32 s76, 2
        """)
    else:
        a("""
        s_memtime s[60:61]
        s_memrealtime s[62:63]
        s_mov_b32 m0, 0
        s_waitcnt lgkmcnt(0)
        """)
def ts_end(a, helper=False):
    if not TS: return
    if helper:
        a("""
        s_memtime s[72:73]
        s_memrealtime s[74:75]
        s_waitcnt lgkmcnt(0)
        s_mov_b32 m0, s76
        s_nop 0
        v_writelane_b32 v127, s72, m0
        s_add_u32 s76, s76, 1
        s_nop 0
        s_mov_b32 m0, s76
        s_nop 0
        v_writelane_b32 v127, s74, m0
        """)
    else:
        a("""
        s_waitcnt lgkmcnt(0)
        s_movreld_b32 s64, s60
        s_movreld_b32 s65, s62
        s_add_u32 m0, m0, 2
        s_waitcnt vmcnt(0)
        s_memtime s[60:61]
        s_memrealtime s[62:63]
        s_waitcnt lgkmcnt(0)
        s_movreld_b32 s64, s60
        s_movreld_b32 s65, s62
        """)
        for k in range(32): a(f"v_writelane_b32 v127, s{64+k}, {k}")
    a(f"""
    s_mul_i32 s60, s2, 12
    s_add_u32 s60, s60, s6
    s_lshl_b32 s60, s60, 8
    s_add_u32 s60, s60, {WS_DBG:#x}
    s_add_u32 s60, s4, s60
    s_addc_u32 s61, s5, 0
    v_mbcnt_lo_u32_b32 v126, -1, 0
    v_mbcnt_hi_u32_b32 v126, -1, v126
    v_lshlrev_b32 v126, 2, v126
    global_store_dword v126, v127, s[60:61]
    """)

KA, VA, KS, VS = 0, 2, 4, 6
KF, VF = 8, 24
S = [40, 56]
QO, QS = 72, 88
OO, OS = 104, 136

def kread(s, unit):
    u = unit % 10; half, i = divmod(u, 5)
    base = KS if i == 4 else KA
    off = half*32768 + (0 if i == 4 else i*8192) + s*1024
    return f"ds_read_b128 {vr(KF+4*s,4)}, v{base+(s&1)} offset:{off}"

def vread(b, ks, j, unit):
    u = unit % 10; half, i = divmod(u, 5)
    base = VS if i == 4 else VA
    off = half*32768 + (0 if i == 4 else i*8192) + b*2048 + ks*256
    f = VF + 4*(2*ks+b) + 2*j
    return f"ds_read_b64_tr_b16 {vr(f,2)}, v{base+j} offset:{off}"

def qk(s, unit):
    q = QS if unit % 5 == 4 else QO
    return mfma(S[unit & 1], KF+4*s, q+4*s, 0 if s == 0 else None)

def pv(b, ks, unit):
    o = OS if unit % 5 == 4 else OO
    return mfma(o+16*b, VF+4*(2*ks+b), S[unit & 1]+8*ks)

def ex(unit, r):
    return f"v_exp_f32 v{S[unit&1]+r}, v{S[unit&1]+r}"
def cv(unit, p):
    s = S[unit & 1]
    return f"v_cvt_pk_bf16_f32 v{s+(p&3)+8*(p>>2)}, v{s+2*p}, v{s+2*p+1}"

def unit_code(u, extra=None):
    extra = extra or {}
    out = []
    for g in range(8):
        if g == 0: out.append("s_waitcnt lgkmcnt(8)")
        if g == 4: out.append("s_waitcnt lgkmcnt(4)")
        if g < 4:
            out.append(qk(g, u+1))
            rd = [kread(g, u+2)]
        else:
            b, ks = (g-4) & 1, (g-4) >> 1
            out.append(pv(b, ks, u))
            rd = [vread(b, ks, 0, u+1), vread(b, ks, 1, u+1)]
        if g < 5:   eu, ep = u, g+3
        else:       eu, ep = u+1, g-5
        if g < 6:   cu, cp = u, g+2
        else:       cu, cp = u+1, g-6
        out.append(cv(cu, cp))
        out.append(rd[0])
        out.append(ex(eu, 2*ep))
        out += rd[1:]
        out.append(ex(eu, 2*ep+1))
        out += extra.get(g, [])
    return out

def k2():
    a = Asm()
    a(f"""
    s_load_dwordx2 s[4:5], s[0:1], 88
    v_lshrrev_b32 v1, 6, v0
    s_cmp_ge_u32 s2, {K2_GRID}
    s_cbranch_scc1 K2_END
    v_readfirstlane_b32 s6, v1           ; wave
    v_and_b32 v0, 63, v0                 ; lane
    s_lshr_b32 s7, s2, 2                 ; qb
    s_and_b32 s8, s2, 3                  ; split
    s_cmp_ge_u32 s6, 8
    s_cbranch_scc1 K2_HELP
    """)
    ts_start(a)
    a(f"""
    s_and_b32 s9, s6, 3                  ; j
    s_lshr_b32 s14, s6, 2                ; parity
    s_mul_i32 s15, s7, 5
    s_add_u32 s16, s15, s9
    s_lshl_b32 s16, s16, 12
    s_add_u32 s16, s16, {WS_Q:#x}
    s_lshl_b32 s17, s15, 12
    s_add_u32 s17, s17, {WS_Q + 4*4096:#x}
    v_lshlrev_b32 v40, 4, v0             ; lane*16
    s_waitcnt lgkmcnt(0)
    s_add_u32 s10, s4, s16
    s_addc_u32 s11, s5, 0
    s_add_u32 s12, s4, s17
    s_addc_u32 s13, s5, 0
    """)
    for s in range(4):
        a(f"global_load_dwordx4 {vr(QO+4*s,4)}, v40, s[10:11] offset:{1024*s}")
    for s in range(4):
        a(f"global_load_dwordx4 {vr(QS+4*s,4)}, v40, s[12:13] offset:{1024*s}")
    a(f"""
    s_lshl_b32 s18, s14, 12              ; par*4096
    s_lshl_b32 s19, s9, 13               ; j*8192
    v_and_b32 v41, 31, v0                ; n
    v_lshrrev_b32 v42, 5, v0             ; h
    v_lshlrev_b32 v43, 2, v42
    v_xor_b32 v43, v43, v41              ; n ^ 4h
    v_lshlrev_b32 v43, 4, v43
    v_lshl_add_u32 v43, v42, 9, v43
    v_bfe_u32 v44, v0, 4, 1              ; G&1
    v_bfe_u32 v45, v0, 1, 1              ; cc>>1
    v_lshl_or_b32 v44, v44, 1, v45       ; c3
    v_bfe_u32 v45, v0, 2, 2              ; r
    v_lshl_or_b32 v45, v42, 2, v45       ; key0 = 4h + r
    v_lshlrev_b32 v46, 2, v44
    v_xor_b32 v45, v45, v46
    v_lshlrev_b32 v45, 4, v45
    v_lshl_add_u32 v45, v44, 9, v45
    v_and_b32 v46, 1, v0
    v_lshl_add_u32 v45, v46, 3, v45
    v_add_u32 v{KA}, s18, v43
    v_add_u32 v{VA}, s18, v45
    v_xor_b32 v{KA+1}, 128, v{KA}
    v_xor_b32 v{VA+1}, 128, v{VA}
    v_add_u32 v{KS}, s19, v{KA}
    v_add_u32 v{KS+1}, s19, v{KA+1}
    v_add_u32 v{VS}, s19, v{VA}
    v_add_u32 v{VS+1}, s19, v{VA+1}
    """)
    for r in range(64):
        a(f"v_mov_b32 v{OO+r}, 0")
    a("s_mov_b32 s20, 5")
    ts_bar(a)
    for s in range(4): a(kread(s, 0))
    a("s_waitcnt vmcnt(0) lgkmcnt(0)")
    for s in range(4):
        a(qk(s, 0)); a(kread(s, 1))
    for ks in range(2):
        for b in range(2):
            a(vread(b, ks, 0, 0)); a(vread(b, ks, 1, 0))
    a("s_nop 3")
    for r in range(6): a(ex(0, r))
    a(cv(0, 0)); a(cv(0, 1))
    a(".p2align 6")
    a.label("K2_LOOP")
    for u in range(10):
        extra = {}
        if u == 7:
            extra = {4: [f"v_xor_b32 v{KA}, 0x10000, v{KA}"], 5: [f"v_xor_b32 v{KA+1}, 0x10000, v{KA+1}"],
                     6: [f"v_xor_b32 v{KS}, 0x10000, v{KS}"], 7: [f"v_xor_b32 v{KS+1}, 0x10000, v{KS+1}"]}
        if u == 9:
            extra = {0: [f"v_xor_b32 v{VA}, 0x10000, v{VA}"], 1: [f"v_xor_b32 v{VA+1}, 0x10000, v{VA+1}"],
                     2: [f"v_xor_b32 v{VS}, 0x10000, v{VS}"], 3: [f"v_xor_b32 v{VS+1}, 0x10000, v{VS+1}"],
                     5: ["s_sub_u32 s20, s20, 1"], 6: ["s_cmp_lg_u32 s20, 0"]}
        if u % 5 == 3: ts_bar(a)
        for x in unit_code(u, extra): a(x)
    a("s_cbranch_scc1 K2_LOOP")
    a(f"""
    v_mbcnt_lo_u32_b32 v0, -1, 0
    v_mbcnt_hi_u32_b32 v0, -1, v0
    s_lshl_b32 s21, s6, 12               ; w*4096
    s_lshl_b32 s22, s6, 13               ; w*8192
    s_add_u32 s22, s22, 65536
    s_xor_b32 s23, s21, {4*4096}
    s_lshl_b32 s24, s6, 10
    s_add_u32 s24, s24, 65536
    v_lshlrev_b32 v0, 4, v0              ; lane*16
    v_add_u32 v1, s21, v0
    v_add_u32 v2, s22, v0
    v_add_u32 v3, s23, v0
    v_add_u32 v4, s24, v0
    s_mul_i32 s25, s2, {5*8192}
    s_lshl_b32 s26, s9, 13
    s_add_u32 s26, s26, s18              ; j*8192 + par*4096
    s_add_u32 s26, s26, s25
    s_add_u32 s26, s26, {WS_PART:#x}
    s_add_u32 s28, s4, s26
    s_addc_u32 s29, s5, 0
    s_lshl_b32 s27, s6, 10
    s_add_u32 s27, s27, s25
    s_add_u32 s27, s27, {WS_PART + 4*8192:#x}
    s_add_u32 s30, s4, s27
    s_addc_u32 s31, s5, 0
    s_waitcnt lgkmcnt(0)
    s_cmp_eq_u32 s14, 0
    s_cbranch_scc1 K2_EP0
    """)
    for q in range(4): a(f"ds_write_b128 v1, {vr(OO+4*q,4)} offset:{1024*q}")
    for q in range(16): a(f"v_mov_b32 v{KF+q}, v{OO+16+q}")
    a("s_branch K2_EP1")
    a.label("K2_EP0")
    for q in range(4): a(f"ds_write_b128 v1, {vr(OO+16+4*q,4)} offset:{1024*q}")
    for q in range(16): a(f"v_mov_b32 v{KF+q}, v{OO+q}")
    a.label("K2_EP1")
    for q in range(8): a(f"ds_write_b128 v2, {vr(OS+4*q,4)} offset:{1024*q}")
    a("s_waitcnt lgkmcnt(0)")
    ts_bar(a)
    for q in range(4): a(f"ds_read_b128 {vr(40+4*q,4)}, v3 offset:{1024*q}")
    for w in range(8): a(f"ds_read_b128 {vr(72+4*w,4)}, v4 offset:{8192*w}")
    for q in range(4):
        a(f"s_waitcnt lgkmcnt({11-q})")
        a(f"v_pk_add_f32 {vr(KF+4*q,2)}, {vr(KF+4*q,2)}, {vr(40+4*q,2)}")
        a(f"v_pk_add_f32 {vr(KF+4*q+2,2)}, {vr(KF+4*q+2,2)}, {vr(42+4*q,2)}")
        a(f"global_store_dwordx4 v0, {vr(KF+4*q,4)}, s[28:29] offset:{1024*q}")
    a("s_waitcnt lgkmcnt(0)")
    for st in (4, 8, 16):
        for w in range(0, 32, 2*st):
            a(f"v_pk_add_f32 {vr(72+w,2)}, {vr(72+w,2)}, {vr(72+w+st,2)}")
            a(f"v_pk_add_f32 {vr(74+w,2)}, {vr(74+w,2)}, {vr(74+w+st,2)}")
    a(f"global_store_dwordx4 v0, {vr(72,4)}, s[30:31]")
    ts_end(a)
    a("s_endpgm")

    a.label("K2_HELP")
    ts_start(a, True)
    EN = 16
    AD = 40
    PR = 64
    DT = 84
    a(f"""
    s_sub_u32 s9, s6, 8                  ; hw
    v_lshlrev_b32 v1, 4, v0              ; lane*16
    s_mul_i32 s14, s8, {80*4096}
    s_lshl_b32 s15, s9, 13               ; hw*8192
    s_add_u32 s14, s14, s15
    s_lshl_b32 s16, s9, 6
    v_add_u32 v2, s16, v0                ; producer p
    s_lshl_b32 s17, s2, 2
    v_lshl_add_u32 v3, v2, 10, s17       ; p*1024 + b*4
    s_waitcnt lgkmcnt(0)
    """)
    srd(a, 32, 4, 5, WS_KV, 320*4096)
    def dma(a):
        a(f"s_mov_b32 m0, s15")
        a(f"s_add_u32 s18, s14, 4096")
        for k in range(4): a(f"buffer_load_dwordx4 v1, s[32:35], s14 offen offset:{1024*k} lds")
        a(f"s_add_u32 m0, s15, 4096")
        a(f"s_add_u32 s14, s14, 32768")
        for k in range(4): a(f"buffer_load_dwordx4 v1, s[32:35], s18 offen offset:{1024*k} lds")
        a(f"s_add_u32 s15, s15, 32768")
        a(f"s_and_b32 s15, s15, 0x1ffff")
    dma(a)
    srd(a, 36, 4, 5, WS_OFFS, 250*1024)
    a("buffer_load_dword v4, v3, s[36:39], 0 offen")
    dma(a)
    srd(a, 40, 4, 5, WS_ENT, 250*10240)
    srd(a, 44, 4, 5, WS_H16, N, stride=128)
    srd(a, 48, 4, 5, WS_AGG, N*256)
    a(f"""
    v_mov_b32 v8, -1
    v_mov_b32 v9, -1
    v_mov_b32 v10, -1
    v_mov_b32 v11, -1
    v_lshlrev_b32 v5, 4, v2
    v_add_u32 v5, {L_LIST}, v5
    """)
    for k in range(5): a(f"ds_write_b128 v5, v[8:11] offset:{4096*k}")
    a(f"""
    v_lshlrev_b32 v6, 2, v2
    v_add_u32 v6, {L_CNT}, v6
    v_lshlrev_b32 v7, 9, v2
    v_add_u32 v7, {L_LIST}, v7
    ds_write_b32 v6, v7
    v_mul_u32_u24 v12, 10240, v2         ; p*10240
    v_mov_b32 v13, 2
    v_and_b32 v14, 7, v0
    v_lshlrev_b32 v14, 4, v14            ; (lane&7)*16
    """)
    for k in range(10): a(f"v_mov_b32 v{PR+2*k+1}, v14")
    a(f"""
    s_waitcnt vmcnt(9) lgkmcnt(0)
    """)
    ts_bar(a, True)
    a(f"""
    s_waitcnt vmcnt(8)
    v_and_b32 v5, 0xffff, v4
    v_add_u32 v12, v12, v5
    v_lshrrev_b32 v4, 18, v4
    """)
    def entloads(a):
        for k in range(6):
            a(f"v_cmp_lt_i32 vcc, {4*k}, v4")
            a(f"s_and_b64 exec, exec, vcc")
            a(f"buffer_load_dwordx4 {vr(EN+4*k,4)}, v12, s[40:43], 0 offen offset:{16*k}")
        a("s_mov_b64 exec, -1")
    entloads(a)
    dma(a)
    a("s_waitcnt vmcnt(14)")
    ts_bar(a, True)
    dma(a)
    a("s_waitcnt vmcnt(8)")
    a.label("K2_SORT")
    for g in range(3):
        for k in range(8*g, 8*g+8):
            a(f"v_cmp_lt_i32 vcc, {k}, v4")
            a(f"v_lshrrev_b32 v{AD+k}, 16, v{EN+k}")
            a(f"s_and_b64 exec, exec, vcc")
            a(f"s_mov_b64 s[{52+2*(k&7)}:{53+2*(k&7)}], exec")
            a(f"ds_add_rtn_u32 v{AD+k}, v{AD+k}, v13 offset:{L_CNT & 0xffff}" if False else f"v_add_u32 v{AD+k}, {L_CNT}, v{AD+k}")
            a(f"ds_add_rtn_u32 v{AD+k}, v{AD+k}, v13")
        for k in range(8*g, 8*g+8):
            a(f"s_mov_b64 exec, s[{52+2*(k&7)}:{53+2*(k&7)}]")
            a(f"s_waitcnt lgkmcnt(7)")
            a(f"ds_write_b16 v{AD+k}, v{EN+k}")
        if g < 2: a("s_cbranch_execz K2_SORTED")
    a(f"""
    s_mov_b64 exec, -1
    v_subrev_u32 v4, 24, v4
    v_add_u32 v12, 96, v12
    v_cmp_lt_i32 vcc, 0, v4
    s_cbranch_vccz K2_SORTED
    s_waitcnt lgkmcnt(0)
    """)
    entloads(a)
    a("s_waitcnt vmcnt(0)")
    a("s_branch K2_SORT")
    a.label("K2_SORTED")
    a(f"""
    s_mov_b64 exec, -1
    s_waitcnt lgkmcnt(0)
    """)
    ts_bar(a, True)
    a(f"""
    v_lshlrev_b32 v6, 2, v0
    v_add_u32 v6, {L_CNT}, v6
    ds_read_b32 v4, v6
    v_lshlrev_b32 v7, 9, v0
    v_add_u32 v7, {L_LIST}, v7
    s_mul_i32 s21, s9, 10
    s_add_u32 s22, s21, 10               ; end
    s_mov_b32 s23, 2
    v_lshrrev_b32 v15, 3, v0
    v_lshlrev_b32 v15, 1, v15            ; group*2
    v_add_u32 v15, {L_LIST}, v15
    v_and_b32 v5, 7, v0
    v_lshlrev_b32 v5, 5, v5              ; c*32 bytes
    v_lshrrev_b32 v8, 4, v0
    v_lshl_add_u32 v5, v8, 3, v5
    v_and_b32 v8, 8, v0
    v_lshl_add_u32 v5, v8, 28, v5
    s_mul_i32 s24, s2, {40*256}
    s_waitcnt lgkmcnt(0)
    v_sub_u32 v4, v4, v7
    v_cmp_lt_u32 vcc, {2*CAP}, v4
    s_mov_b32 s25, 0
    s_cbranch_vccz K2_PER
    s_mov_b32 s25, 1
    s_mov_b32 s21, s22
    """)
    a.label("K2_PER")
    a(f"""
    s_cmp_ge_u32 s23, 8
    s_cbranch_scc1 K2_NODMA
    """)
    dma(a)
    a.label("K2_NODMA")
    a(f"""
    s_cmp_lt_u32 s23, 4
    s_cselect_b32 s26, 2, 1
    """)
    a.label("K2_NODE")
    a(f"""
    s_cmp_ge_u32 s21, s22
    s_cbranch_scc1 K2_PEREND
    s_lshl_b32 s27, s21, 9
    v_readlane_b32 s28, v4, s21          ; bytes
    v_add_u32 v9, s27, v15
    v_mov_b32 v10, 0
    v_mov_b32 v11, 0
    """)
    a.label("K2_CHUNK")
    for k in range(10): a(f"ds_read_u16 v{PR+2*k}, v9 offset:{16*k}")
    for k in range(10):
        a(f"s_waitcnt lgkmcnt({9-k})")
        a(f"buffer_load_dwordx4 {vr(DT+4*k,4)}, {vr(PR+2*k,2)}, s[44:47], 0 idxen offen")
    for k in range(1, 10):
        a(f"s_waitcnt vmcnt({9-k})")
        for r in range(4): a(f"v_pk_add_f16 v{DT+r}, v{DT+r}, v{DT+4*k+r}")
    a(f"""
    s_sub_i32 s28, s28, 160
    s_nop 0
    v_permlane32_swap_b32 v{DT}, v{DT+2}
    v_permlane32_swap_b32 v{DT+1}, v{DT+3}
    v_pk_add_f16 v{DT}, v{DT}, v{DT+2}
    v_pk_add_f16 v{DT+1}, v{DT+1}, v{DT+3}
    s_nop 1
    v_permlane16_swap_b32 v{DT}, v{DT+1}
    v_pk_add_f16 v{DT}, v{DT}, v{DT+1}
    v_add_u32 v9, 160, v9
    v_fma_mix_f32 v10, v{DT}, 1.0, v10 op_sel:[0,0,0] op_sel_hi:[1,0,0]
    v_fma_mix_f32 v11, v{DT}, 1.0, v11 op_sel:[1,0,0] op_sel_hi:[1,0,0]
    s_cmp_gt_i32 s28, 0
    s_cbranch_scc1 K2_CHUNK
    s_lshl_b32 s27, s21, 8
    s_add_u32 s27, s27, s24
    v_add_f32_dpp v10, v10, v10 row_ror:8 row_mask:0xf bank_mask:0xf
    v_add_f32_dpp v11, v11, v11 row_ror:8 row_mask:0xf bank_mask:0xf
    v_add_u32 v8, s27, v5
    s_add_u32 s21, s21, 1
    s_sub_u32 s26, s26, 1
    buffer_store_dwordx2 v[10:11], v8, s[48:51], 0 offen
    s_cmp_lg_u32 s26, 0
    s_cbranch_scc1 K2_NODE
    """)
    a.label("K2_PEREND")
    a(f"""
    s_waitcnt vmcnt(0)
    """)
    ts_bar(a, True)
    a(f"""
    s_add_u32 s23, s23, 1
    s_cmp_lt_u32 s23, 11
    s_cbranch_scc1 K2_PER
    """)
    ts_end(a, True)
    a(f"""
    s_cmp_eq_u32 s25, 0
    s_cbranch_scc1 K2_END
    """)
    a(f"""
    s_mul_i32 s21, s9, 10
    s_mul_i32 s22, s9, 2560
    v_lshlrev_b32 v6, 2, v0
    v_add_u32 v6, {L_LIST}, v6
    v_add_u32 v7, s22, v6
    v_mov_b32 v8, 0
    v_lshlrev_b32 v9, 1, v0              ; lane*2
    """)
    for k in range(10): a(f"ds_write_b32 v7, v8 offset:{256*k}")
    srd(a, 44, 4, 5, WS_H16, N*128)
    a(f"""
    s_add_u32 s52, s4, {WS_OFFS:#x}
    s_addc_u32 s53, s5, 0
    s_add_u32 s54, s4, {WS_ENT:#x}
    s_addc_u32 s55, s5, 0
    s_mov_b32 s23, 0                     ; p
    """)
    a.label("K2_SP")
    a(f"""
    s_lshl_b32 s26, s23, 10
    s_add_u32 s26, s26, s17
    s_load_dword s27, s[52:53], s26
    s_mul_i32 s28, s23, 10240
    s_waitcnt lgkmcnt(0)
    s_and_b32 s29, s27, 0xffff
    s_add_u32 s28, s28, s29
    s_lshr_b32 s29, s27, 16
    s_add_u32 s29, s29, s28              ; end
    """)
    a.label("K2_SE")
    a(f"""
    s_cmp_ge_u32 s28, s29
    s_cbranch_scc1 K2_SPN
    s_load_dword s27, s[54:55], s28
    s_add_u32 s28, s28, 4
    s_waitcnt lgkmcnt(0)
    s_lshr_b32 s30, s27, 18
    s_sub_u32 s31, s30, s21
    s_cmp_ge_u32 s31, 10
    s_cbranch_scc1 K2_SE
    s_and_b32 s27, s27, 0xffff
    s_lshl_b32 s27, s27, 7
    v_add_u32 v12, s27, v9
    buffer_load_ushort v10, v12, s[44:47], 0 offen
    s_lshl_b32 s30, s30, 8
    v_add_u32 v11, s30, v6
    ds_read_b32 v13, v11
    s_waitcnt vmcnt(0) lgkmcnt(0)
    v_cvt_f32_f16 v10, v10
    v_add_f32 v10, v10, v13
    ds_write_b32 v11, v10
    s_branch K2_SE
    """)
    a.label("K2_SPN")
    a(f"""
    s_add_u32 s23, s23, 1
    s_cmp_lt_u32 s23, 250
    s_cbranch_scc1 K2_SP
    s_waitcnt lgkmcnt(0)
    s_add_u32 s24, s24, s22
    v_lshlrev_b32 v8, 2, v0
    v_add_u32 v8, s24, v8
    """)
    for k in range(10): a(f"ds_read_b32 v{16+k}, v7 offset:{256*k}")
    a("s_waitcnt lgkmcnt(0)")
    for k in range(10): a(f"buffer_store_dword v{16+k}, v8, s[48:51], 0 offen offset:{256*k}")
    a.label("K2_END")
    a("s_endpgm")
    return a, 168

if __name__ == "__main__":
    a, vg = k2()
    print(assemble_file([("gps_attn_kernel", a, vg, K2_GRID, 768, K2_LDS)], "k2.s"))
```

```python
import sys
from gen import *
from k2 import *
from k3 import *
a1, v1 = k1(); a2, v2 = k2(); a3, v3 = k3()
e = Asm(); e("s_endpgm")
L = [("gps_prep_kernel", a1, v1, K1_GRID, 256, K1_LDS),
     ("gps_attn_kernel", a2, v2, K2_GRID, 768, K2_LDS),
     ("gps_comb_kernel", a3, v3, K3_GRID, 64, K3_LDS)]
assemble_file(L + [("gps_nop_kernel", e, 8, 1, 64, 0)]*4, "nop4.s")
assemble_file([L[0]]*2 + L[1:], "k1x2.s")
assemble_file(L + [L[2]], "k3x2.s")
assemble_file([L[0], L[1], L[1], L[2]], "k2x2.s")
```

```python
from gen import *
from k1 import *
from k2 import *
from k3 import *
def kernels():
    a1, v1 = k1(); a2, v2 = k2(); a3, v3 = k3()
    return [("gps_prep_kernel", a1, v1, K1_GRID, K1_BLOCK, K1_LDS),
            ("gps_attn_kernel", a2, v2, K2_GRID, 768, K2_LDS),
            ("gps_comb_kernel", a3, v3, K3_GRID, 64, K3_LDS)]
```

```python
import sys, re
from gen import *
import importlib
mods = sys.argv[2:] if len(sys.argv) > 2 else None
from k2 import *
from k3 import *
import build_cfg
L = build_cfg.kernels()
RT = 0x3000000
def instrument(a, kidx, nw):
    out = ["s_memrealtime s[96:97]", "s_mov_b32 s98, s2", "v_readfirstlane_b32 s99, v0"]
    cnt = 0
    for ln in a.lines:
        if ln.startswith("s_endpgm"):
            cnt += 1
            out += f"""s_waitcnt vmcnt(0) lgkmcnt(0)
s_memrealtime s[94:95]
s_load_dwordx2 s[92:93], s[0:1], 88
s_mov_b64 exec, 1
s_lshr_b32 s99, s99, 6
s_mul_i32 s98, s98, {nw}
s_add_u32 s98, s98, s99
s_lshl_b32 s98, s98, 3
s_add_u32 s98, s98, {RT + kidx*0x10000:#x}
s_waitcnt lgkmcnt(0)
v_mov_b32 v0, s98
v_mov_b32 v2, s96
v_mov_b32 v3, s94
global_store_dwordx2 v0, v[2:3], s[92:93]
s_endpgm""".split("\n")
        else:
            out.append(ln)
    a.lines = out
for i, (label, a, vg, grid, block, lds) in enumerate(L):
    instrument(a, i, block//64)
r = Asm()
n = len(L)
r(f"""
s_load_dwordx4 s[4:7], s[0:1], 80
s_cmp_ge_u32 s2, 16
s_cbranch_scc1 R_END
s_lshl_b32 s3, s2, 8
v_add_u32 v1, s3, v0
v_lshlrev_b32 v2, 3, v1
s_waitcnt lgkmcnt(0)
s_sub_u32 s4, s4, 0
s_subb_u32 s5, s5, 0
s_add_u32 s6, s6, {RT:#x}
s_addc_u32 s7, s7, 0
v_mov_b32 v8, 0
""")
for i, (label, a, vg, grid, block, lds) in enumerate(L):
    r(f"""
    v_cmp_gt_u32 vcc, {grid*block//64}, v1
    s_and_saveexec_b64 s[8:9], vcc
    s_cbranch_execz R_SK{i}
    global_load_dwordx2 v[4:5], v2, s[6:7]
    s_waitcnt vmcnt(0)
    v_not_b32 v6, v4
    v_not_b32 v7, v5
    global_atomic_umax v8, v6, s[4:5] offset:{16*i}
    global_atomic_umax v8, v4, s[4:5] offset:{16*i+4}
    global_atomic_umax v8, v7, s[4:5] offset:{16*i+8}
    global_atomic_umax v8, v5, s[4:5] offset:{16*i+12}
    """)
    r.label(f"R_SK{i}")
    r(f"""
    s_mov_b64 exec, s[8:9]
    v_add_u32 v2, 0x10000, v2
    """)
r.label("R_END")
r("s_endpgm")
print(assemble_file(L + [("gps_rep_kernel", r, 16, 16, 256, 0)], sys.argv[1]))
```

```python
import re

class Asm:
    def __init__(self):
        self.lines = []
    def __call__(self, s):
        for ln in s.strip("\n").split("\n"):
            ln = ln.strip()
            if ln:
                self.lines.append(ln)
    def label(self, name):
        self.lines.append(name + ":")
    def text(self):
        out = []
        for ln in self.lines:
            if ln.endswith(":") or ln.startswith("."):
                out.append(ln)
            else:
                out.append("    " + ln)
        return "\n".join(out) + "\n"

def vr(a, n=1):
    return f"v{a}" if n == 1 else f"v[{a}:{a+n-1}]"
def sr(a, n=1):
    return f"s{a}" if n == 1 else f"s[{a}:{a+n-1}]"

_REG = re.compile(r"\b([vsa])(\d+)\b|\b([vsa])\[(\d+):(\d+)\]|\b(vcc|exec|m0)\b")
def regs_of(tok):
    out = set()
    for m in _REG.finditer(tok):
        if m.group(1):
            out.add((m.group(1), int(m.group(2))))
        elif m.group(3):
            for i in range(int(m.group(4)), int(m.group(5)) + 1):
                out.add((m.group(3), i))
        else:
            out.add((m.group(6), 0))
    return out

def split_ops(s):
    ops, depth, cur = [], 0, ""
    for ch in s:
        if ch == "[": depth += 1
        if ch == "]": depth -= 1
        if ch == "," and depth == 0:
            ops.append(cur.strip()); cur = ""
        else:
            cur += ch
    if cur.strip(): ops.append(cur.strip())
    return ops

TRANS = ("v_exp_", "v_log_", "v_rcp_", "v_rsq_", "v_sqrt_", "v_sin_", "v_cos_")

class Ins:
    def __init__(self, ln):
        self.ln = ln
        ln = ln.split(";")[0].strip()
        p = ln.split(None, 1)
        self.op = p[0]
        self.ops = split_ops(p[1]) if len(p) > 1 else []
        op = self.op
        self.mfma = op.startswith(("v_mfma", "v_smfmac"))
        self.valu = op.startswith("v_") and not self.mfma
        self.trans = op.startswith(TRANS)
        self.ds = op.startswith("ds_")
        self.vmem = op.startswith(("buffer_", "global_"))
        self.salu = op.startswith("s_")
        self.dpp = "_dpp" in op or "row_" in ln or "quad_perm" in ln
        self.perm = op.startswith("v_permlane")
        self.states = 1
        if op == "s_nop":
            self.states = int(self.ops[0], 0) + 1
        R = [regs_of(o) for o in self.ops]
        self.w, self.r = set(), set()
        self.srcC = set(); self.srcAB = set()
        self.storedata = set()
        if self.mfma:
            self.w = R[0]; self.srcAB = R[1] | R[2]; self.srcC = R[3]
            if op.startswith("v_smfmac"): self.srcAB = self.srcAB | R[3]; self.srcC = R[0]
            self.r = self.srcAB | self.srcC
            self.passes = 8 if "32x32" in op else 4
        elif self.valu:
            if op.startswith("v_cmpx"):
                self.w = R[0] | {("exec", 0)}; self.r = set().union(*R[1:])
            elif self.perm:
                self.w = R[0] | R[1]; self.r = R[0] | R[1]
            elif op.startswith(("v_add_co", "v_sub_co", "v_addc_co", "v_subb_co")):
                self.w = R[0] | R[1]; self.r = set().union(*R[2:])
            else:
                self.w = R[0]; self.r = set().union(*R[1:]) if len(R) > 1 else set()
                if op.startswith(("v_fmac", "v_dot2c", "v_writelane")) or self.dpp or "UNUSED_PRESERVE" in ln:
                    self.r |= R[0]
        elif self.ds:
            if op.startswith(("ds_read", "ds_bpermute", "ds_permute", "ds_swizzle")) or "_rtn" in op:
                self.w = R[0]; self.r = set().union(*R[1:])
            else:
                self.r = set().union(*R)
        elif self.vmem:
            if " lds" in ln or op.startswith(("global_load_lds", "buffer_wbl2", "buffer_inv")):
                self.r = (set().union(*R) if R else set()) | {("m0", 0)}
            elif "load" in op:
                self.w = R[0]; self.r = set().union(*R[1:])
            else:
                self.r = set().union(*R)
                if op.startswith("buffer_store") and ("x4" in op or "x3" in op): self.storedata = R[0]
                if op.startswith("global_store") and ("x4" in op or "x3" in op): self.storedata = R[1]
                if "atomic" in op and "sc0" in ln: self.w = R[0]
        elif self.salu:
            if op.startswith(("s_cmp", "s_waitcnt", "s_barrier", "s_nop", "s_branch", "s_cbranch", "s_endpgm", "s_setprio", "s_sleep", "s_bitcmp")):
                self.r = set().union(*R) if R else set()
            else:
                self.w = R[0] if R else set(); self.r = set().union(*R[1:]) if len(R) > 1 else set()
                if "saveexec" in op: self.w = self.w | {("exec", 0)}

def isv(x): return x[0] in ("v", "a")
def iss(x): return x[0] in ("s", "vcc")

def need(a, b):
    n = 0
    vw = {x for x in a.w if isv(x)}
    sw = {x for x in a.w if iss(x)}
    if a.mfma:
        P = a.passes
        if b.mfma:
            if vw & b.srcAB: n = max(n, {4: 8, 8: 12}[P])
            if vw & b.srcC and (a.w != b.srcC or a.passes != b.passes): n = max(n, {4: 6, 8: 10}[P])
        elif (b.valu or b.ds or b.vmem) and (vw & (b.r | b.w)):
            n = max(n, {4: 8, 8: 12}[P])
        if b.valu and (a.srcC & b.w): n = max(n, {4: 3, 8: 7}[P])
    if a.valu:
        if b.mfma and (vw & b.r): n = max(n, 2)
        if b.mfma and ("exec", 0) in a.w: n = max(n, 4)
        if a.trans and b.valu and not b.trans and (vw & b.r): n = max(n, 1)
        if b.perm and (vw & b.r): n = max(n, 2)
        if b.dpp and b.valu and (vw & b.r): n = max(n, 2)
        if b.op.startswith(("v_readlane", "v_readfirstlane")) and (vw & b.r): n = max(n, 1)
        if b.valu and (sw & b.r): n = max(n, 4 if b.op.startswith(("v_readlane", "v_writelane")) else 2)
        if b.vmem and (sw & b.r): n = max(n, 5)
        if ("exec", 0) in a.w:
            if b.dpp: n = max(n, 5)
            if b.perm or b.op.startswith(("v_readlane", "v_readfirstlane", "v_writelane")): n = max(n, 4)
        if ("sdwa" in a.op or "op_sel" in a.ln and not a.op.startswith(("v_pk", "v_fma_mix_f32"))) and b.valu and (vw & (b.r | b.w)): n = max(n, 1)
        if a.op.startswith("v_dot") and (b.valu or b.mfma) and (vw & (b.r | b.w)) and a.op != b.op: n = max(n, 3)
    if a.storedata and (a.storedata & b.w): n = max(n, 2)
    if a.salu and ("m0", 0) in a.w and b.vmem and ("m0", 0) in b.r: n = max(n, 1)
    return n

def check(lines, name=""):
    ins, labels = [], {}
    for ln in lines:
        if ln.endswith(":"):
            labels[ln[:-1]] = len(ins)
        elif ln.startswith(".") or ln.startswith(";"):
            continue
        else:
            ins.append(Ins(ln))
    bad = 0
    def succ(i):
        a = ins[i]
        if a.op == "s_endpgm": return []
        if a.op == "s_branch": return [labels[a.ops[0]]]
        if a.op.startswith("s_cbranch"): return [i + 1, labels[a.ops[0]]]
        return [i + 1]
    for i, a in enumerate(ins):
        if not (a.mfma or a.valu or a.storedata or (a.salu and ("m0", 0) in a.w)): continue
        seen = {}
        stack = [(j, 0) for j in succ(i)]
        while stack:
            j, d = stack.pop()
            if j >= len(ins) or d >= 13 or seen.get(j, 99) <= d: continue
            seen[j] = d
            b = ins[j]
            n = need(a, b)
            if n > d:
                print(f"HAZARD[{name}] need {n} have {d}: '{a.ln}' -> '{b.ln}'")
                bad += 1
            for k in succ(j):
                stack.append((k, d + b.states))
    return bad
```

```python
import sys
sys.path.insert(0, "gen")
from dsl import *

NAME = "gather_scatter__hybrid_graph_tf_graphgps__graph"
N = 10000
WS_KV   = 0x000000
WS_Q    = 0x140000
WS_H16  = 0x280000
WS_W    = 0x3B9000
WS_M    = 0x3BD000
WS_OFFS = 0x3C0000
WS_ENT  = 0x400000
WS_AGG  = 0x680000
WS_PART = 0x900000
LOG2E_8 = 0x3e38aa3b

def interleave(main, fill, per):
    out, k = [], 0
    for m in main:
        out.append(m)
        out += fill[k:k+per]; k += per
    out += fill[k:]
    return out

def load_args(a):
    a("""
    s_load_dwordx16 s[8:23], s[0:1], 0
    s_load_dwordx8 s[24:31], s[0:1], 64
    """)
X, SRC, DST, DEG, WM, WQ, WK, WV, WO, OUT, DBG, WS = [f"s[{8+2*i}:{9+2*i}]" for i in range(12)]

def srd(a, d, lo, hi, off, nrec, stride=0):
    if off:
        a(f"s_add_u32 s{d}, s{lo}, {off:#x}")
        a(f"s_addc_u32 s{d+1}, s{hi}, 0")
    else:
        a(f"s_mov_b32 s{d}, s{lo}")
        a(f"s_mov_b32 s{d+1}, s{hi}")
    if stride:
        a(f"s_or_b32 s{d+1}, s{d+1}, {stride << 16:#x}")
    a(f"s_mov_b32 s{d+2}, {nrec:#x}")
    a(f"s_mov_b32 s{d+3}, 0x20000")

def mfma(d, A, B, C=None):
    c = "0" if C == 0 and C is not None and not isinstance(C, str) else vr(d if C is None else int(C), 16)
    return f"v_mfma_f32_32x32x16_bf16 {vr(d,16)}, {vr(A,4)}, {vr(B,4)}, {c}"

def pi_calc(a, dst, n, t):
    a(f"""
    v_and_b32 v{dst}, 0x13, v{n}
    v_and_b32 v{t}, 4, v{n}
    v_lshl_or_b32 v{dst}, v{t}, 1, v{dst}
    v_and_b32 v{t}, 8, v{n}
    v_lshrrev_b32 v{t}, 1, v{t}
    v_or_b32 v{dst}, v{dst}, v{t}
    """)

def kernel_block(name, vgpr, sgpr=102):
    acc = (vgpr + 3)//4*4
    return f""".amdhsa_kernel {name}
  .amdhsa_next_free_vgpr {vgpr}
  .amdhsa_next_free_sgpr {sgpr}
  .amdhsa_accum_offset {acc}
  .amdhsa_group_segment_fixed_size 0
  .amdhsa_kernarg_size 96
  .amdhsa_user_sgpr_count 2
  .amdhsa_user_sgpr_kernarg_segment_ptr 1
  .amdhsa_system_sgpr_workgroup_id_x 1
  .amdhsa_float_denorm_mode_32 3
  .amdhsa_float_denorm_mode_16_64 3
.end_amdhsa_kernel
"""

def assemble_file(kernels, path):
    hdr = open(f"cdna_kernels/{NAME}.s.ref").read().split("; Override launch")[0]
    out = hdr
    for (label, a, vg, grid, block, lds) in kernels:
        out += f"; @launch kernel={label} grid=({grid},1,1) block=({block},1,1) lds={lds}\n"
    out += '.amdgcn_target "amdgcn-amd-amdhsa--gfx950"\n.text\n'
    bad = 0
    seen = set()
    for (label, a, vg, grid, block, lds) in kernels:
        if label in seen: continue
        seen.add(label)
        bad += check(a.lines, label)
        out += f".globl {label}\n.p2align 8\n.type {label},@function\n{label}:\n" + a.text()
    out += '.section .rodata,"a"\n'
    seen = set()
    for (label, a, vg, grid, block, lds) in kernels:
        if label in seen: continue
        seen.add(label)
        out += ".p2align 6\n" + kernel_block(label, vg)
    open(path, "w").write(out)
    return bad
```

```python
from gen import *

K1_GRID = 258
K1_BLOCK = 320
K1_LDS = 1024 + 5*1024 + 10240
ST1 = ""

def dpp_sum8(a, r, t=None):
    a(f"""
    s_nop 1
    v_add_f32_dpp v{r}, v{r}, v{r} quad_perm:[1,0,3,2] row_mask:0xf bank_mask:0xf
    s_nop 1
    v_add_f32_dpp v{r}, v{r}, v{r} quad_perm:[2,3,0,1] row_mask:0xf bank_mask:0xf
    s_nop 1
    v_add_f32_dpp v{r}, v{r}, v{r} row_half_mirror row_mask:0xf bank_mask:0xf
    """)

def k1():
    a = Asm()
    load_args(a)
    a(f"""
    s_cmp_ge_u32 s2, {K1_GRID}
    s_cbranch_scc1 K1_END
    s_cmp_lt_u32 s2, 2
    s_cbranch_scc1 K1_WGT
    """)
    XR, F, T = 12, 16, 24
    HB, H16 = 32, 36
    DV, SV, AV, RV = 40, 48, 56, 64
    a(f"""
    s_sub_u32 s3, s2, 2                  ; p
    s_mul_i32 s4, s3, 10240
    s_mul_i32 s5, s3, 5120               ; 40 rows * 128
    v_lshlrev_b32 v1, 4, v0              ; t*16
    v_add_u32 v2, s5, v1                 ; x / h16 offset
    v_add_u32 v3, s4, v1
    v_add_u32 v4, 5120, v3
    v_lshlrev_b32 v6, 2, v0
    v_mov_b32 v7, 0
    ds_write_b32 v6, v7
    s_waitcnt lgkmcnt(0)
    """)
    srd(a, 32, 12, 13, 0, 2560000)
    a(f"buffer_load_dwordx4 {vr(DV,4)}, v3, s[32:35], 0 offen")
    a(f"buffer_load_dwordx4 {vr(DV+4,4)}, v4, s[32:35], 0 offen")
    srd(a, 36, 8, 9, 0, N*128)
    a(f"buffer_load_dwordx4 {vr(XR,4)}, v2, s[36:39], 0 offen")
    srd(a, 40, 10, 11, 0, 2560000)
    a(f"buffer_load_dwordx4 {vr(SV,4)}, v3, s[40:43], 0 offen")
    a(f"buffer_load_dwordx4 {vr(SV+4,4)}, v4, s[40:43], 0 offen")
    srd(a, 44, 30, 31, WS_H16, N*128)
    a(f"""
    s_add_u32 s48, s30, {WS_ENT:#x}
    s_addc_u32 s49, s31, 0
    s_lshl_b32 s6, s3, 10
    s_add_u32 s6, s6, {WS_OFFS:#x}
    s_add_u32 s50, s30, s6
    s_addc_u32 s51, s31, 0
    s_mov_b32 s52, 0xffff0000
    v_mov_b32 v8, 4
    v_and_b32 v9, 63, v0
    v_lshlrev_b32 v9, 4, v9              ; lane*16
    v_lshrrev_b32 v10, 6, v0
    v_lshlrev_b32 v10, 10, v10           ; wave*1024
    v_add_u32 v11, v9, v10
    v_lshrrev_b32 v5, 7, v2              ; row
    v_and_b32 v6, 7, v0                  ; chunk c
    v_and_b32 v7, 3, v0
    v_lshlrev_b32 v7, 2, v7
    v_xor_b32 v7, v7, v5                 ; row ^ ((c&3)<<2)
    v_and_b32 v{T}, 31, v7
    v_lshrrev_b32 v7, 5, v7              ; tile
    v_lshlrev_b32 v7, 12, v7
    v_lshl_add_u32 v7, v{T}, 4, v7
    v_lshl_add_u32 v7, v6, 9, v7
    s_cmp_ge_u32 s3, 250
    v_cmp_eq_u32 s[54:55], 7, v6
    s_cbranch_scc1 K1_PAD
    s_barrier
    s_waitcnt vmcnt(3)
    """)
    for k in range(8):
        a(f"v_mul_u32_u24 v{AV+k}, 52429, v{DV+k}")
        a(f"v_lshrrev_b32 v{AV+k}, 19, v{AV+k}")
        a(f"v_and_b32 v{AV+k}, 0x3fc, v{AV+k}")
        a(f"ds_add_rtn_u32 v{RV+k}, v{AV+k}, v8")
    a("s_waitcnt vmcnt(2)")
    for k in range(4):
        a(f"v_lshlrev_b32 v{F+2*k}, 16, v{XR+k}")
        a(f"v_and_b32 v{F+2*k+1}, s52, v{XR+k}")
    a(f"""
    v_pk_add_f32 {vr(T,2)}, {vr(F,2)}, {vr(F+2,2)}
    v_pk_add_f32 {vr(T+2,2)}, {vr(F+4,2)}, {vr(F+6,2)}
    v_pk_add_f32 {vr(T,2)}, {vr(T,2)}, {vr(T+2,2)}
    v_add_f32 v{T}, v{T}, v{T+1}
    """)
    fill = []
    for k in range(8):
        fill.append(f"v_mad_i32_i24 v{DV+k}, v{AV+k}, -10, v{DV+k}")
        fill.append(f"v_add_u32 v{AV+k}, v{AV+k}, v10")
    def dsum(r):
        for m in ("quad_perm:[1,0,3,2]", "quad_perm:[2,3,0,1]", "row_half_mirror"):
            a(fill.pop(0)); a(fill.pop(0))
            a(f"v_add_f32_dpp v{r}, v{r}, v{r} {m} row_mask:0xf bank_mask:0xf")
    dsum(T)
    a(f"v_mul_f32 v{T}, 0xbc800000, v{T}")
    for k in range(4):
        a(f"v_pk_add_f32 {vr(F+2*k,2)}, {vr(F+2*k,2)}, {vr(T,2)} op_sel_hi:[1,0]")
    a(f"""
    v_pk_mul_f32 {vr(T+2,2)}, {vr(F,2)}, {vr(F,2)}
    v_pk_mul_f32 {vr(T+4,2)}, {vr(F+2,2)}, {vr(F+2,2)}
    v_pk_fma_f32 {vr(T+2,2)}, {vr(F+4,2)}, {vr(F+4,2)}, {vr(T+2,2)}
    v_pk_fma_f32 {vr(T+4,2)}, {vr(F+6,2)}, {vr(F+6,2)}, {vr(T+4,2)}
    v_pk_add_f32 {vr(T+2,2)}, {vr(T+2,2)}, {vr(T+4,2)}
    v_add_f32 v{T}, v{T+2}, v{T+3}
    """)
    dsum(T)
    a(f"""
    v_mov_b32 v{T+2}, 0x3727c5ac         ; eps 1e-5
    v_fmac_f32 v{T+2}, 0x3c800000, v{T}
    v_rsq_f32 v{T}, v{T+2}
    """)
    while fill: a(fill.pop(0))
    for k in range(4):
        a(f"v_pk_mul_f32 {vr(F+2*k,2)}, {vr(F+2*k,2)}, {vr(T,2)} op_sel_hi:[1,0]")
    for k in range(4):
        a(f"v_cvt_pk_f16_f32 v{H16+k}, v{F+2*k}, v{F+2*k+1}")
    a(f"v_cndmask_b32 v{F+7}, v{F+7}, 1.0, s[54:55]")
    a(f"buffer_store_dwordx4 {vr(H16,4)}, v2, s[44:47], 0 offen{ST1}")
    for k in range(4):
        a(f"v_cvt_pk_bf16_f32 v{HB+k}, v{F+2*k}, v{F+2*k+1}")
    a(f"global_store_dwordx4 v7, {vr(HB,4)}, {WS}{ST1}")
    a(f"""
    s_waitcnt lgkmcnt(0)
    s_barrier
    ds_read_b128 v[72:75], v9
    s_waitcnt vmcnt(2)
    """)
    for k in range(8):
        a(f"v_lshl_or_b32 v{SV+k}, v{DV+k}, 18, v{SV+k}")
    a(f"""
    s_waitcnt lgkmcnt(0)
    v_add_u32 v77, v72, v73
    v_add_u32 v78, v77, v74
    v_add_u32 v80, v78, v75
    v_mov_b32 v81, v80
    s_nop 1
    v_add_u32_dpp v81, v81, v81 row_shr:1 row_mask:0xf bank_mask:0xf bound_ctrl:0
    s_nop 1
    v_add_u32_dpp v81, v81, v81 row_shr:2 row_mask:0xf bank_mask:0xf bound_ctrl:0
    s_nop 1
    v_add_u32_dpp v81, v81, v81 row_shr:4 row_mask:0xf bank_mask:0xf bound_ctrl:0
    s_nop 1
    v_add_u32_dpp v81, v81, v81 row_shr:8 row_mask:0xf bank_mask:0xf bound_ctrl:0
    s_nop 1
    v_add_u32_dpp v81, v81, v81 row_bcast:15 row_mask:0xa bank_mask:0xf
    s_nop 1
    v_add_u32_dpp v81, v81, v81 row_bcast:31 row_mask:0xc bank_mask:0xf
    v_sub_u32 v84, v81, v80
    v_add_u32 v85, v84, v72
    v_add_u32 v86, v84, v77
    v_add_u32 v87, v84, v78
    ds_write_b128 v11, v[84:87] offset:1024
    v_lshl_or_b32 v88, v72, 16, v84
    v_lshl_or_b32 v89, v73, 16, v85
    v_lshl_or_b32 v90, v74, 16, v86
    v_lshl_or_b32 v91, v75, 16, v87
    s_waitcnt lgkmcnt(0)
    """)
    for k in range(8):
        a(f"ds_read_b32 v{DV+k}, v{AV+k} offset:1024")
    a(f"""
    v_cmp_gt_u32 vcc, 64, v0
    s_and_saveexec_b64 s[56:57], vcc
    s_cbranch_execz K1_NOTAB
    global_store_dwordx4 v9, v[88:91], s[50:51]{ST1}
    """)
    a.label("K1_NOTAB")
    a("s_mov_b64 exec, s[56:57]")
    for k in range(8):
        a(f"s_waitcnt lgkmcnt(7)")
        a(f"v_add_u32 v{DV+k}, v{DV+k}, v{RV+k}")
        a(f"ds_write_b32 v{DV+k}, v{SV+k} offset:6144")
    a(f"""
    s_waitcnt lgkmcnt(0)
    s_barrier
    ds_read_b128 v[72:75], v1 offset:6144
    ds_read_b128 v[76:79], v1 offset:{6144+5120}
    s_waitcnt lgkmcnt(1)
    global_store_dwordx4 v3, v[72:75], s[48:49]{ST1}
    s_waitcnt lgkmcnt(0)
    global_store_dwordx4 v4, v[76:79], s[48:49]{ST1}
    s_endpgm
    """)
    a.label("K1_PAD")
    for k in range(4): a(f"v_mov_b32 v{HB+k}, 0")
    a(f"global_store_dwordx4 v7, {vr(HB,4)}, {WS}{ST1}")
    a("s_endpgm")

    a.label("K1_WGT")
    AF = 16
    A63 = 48
    BF = 64
    D = 80
    B63 = 112
    a(f"""
    v_lshrrev_b32 v5, 6, v0
    v_and_b32 v1, 31, v0                 ; n
    v_bfe_u32 v2, v0, 5, 1               ; h
    v_readfirstlane_b32 s3, v5           ; wave
    """)
    pi_calc(a, 3, 1, 4)
    a(f"""
    v_lshlrev_b32 v6, 4, v2              ; h*16
    v_and_b32 v12, 63, v0
    v_lshlrev_b32 v12, 4, v12
    v_add_u32 v9, {63*128}, v6
    s_mov_b32 s37, 0x80008000
    s_cmp_ge_u32 s3, 4
    s_cbranch_scc1 K1_END
    s_cmp_eq_u32 s2, 1
    s_cbranch_scc1 K1_M
    s_waitcnt lgkmcnt(0)
    s_cmp_ge_u32 s3, 2
    s_cselect_b32 s32, s22, s16
    s_cselect_b32 s33, s23, s17
    s_cselect_b32 s34, -1, 0
    s_cselect_b64 vcc, -1, 0
    s_and_b32 s35, s3, 1                 ; b
    v_cndmask_b32 v7, v3, v1, vcc
    v_lshl_add_u32 v7, v7, 7, v6
    v_add_u32 v8, 4096, v7
    s_lshl_b32 s36, s35, 6               ; b*32*2 bytes
    v_lshlrev_b32 v10, 10, v2            ; h*8 rows * 128
    v_lshl_add_u32 v10, v3, 1, v10
    v_add_u32 v10, s36, v10
    v_add_u32 v11, 4096, v10             ; s=2,3
    """)
    for s in range(4):
        for j in range(8):
            a(f"global_load_ushort v{112+8*s+j}, v{10+s//2}, {WO} offset:{(s&1)*2048 + j*128}")
    for A in range(2):
        for s in range(4):
            a(f"global_load_dwordx4 {vr(AF+16*A+4*s,4)}, v{7+A}, s[32:33] offset:{32*s}")
    for s in range(4):
        a(f"global_load_dwordx4 {vr(A63+4*s,4)}, v9, s[32:33] offset:{32*s}")
    a(f"""
    s_lshl_b32 s38, s3, 12
    s_add_u32 s38, s38, {WS_W:#x}
    s_add_u32 s40, s30, s38
    s_addc_u32 s41, s31, 0
    s_waitcnt vmcnt(12)
    """)
    for k in range(16):
        a(f"v_lshl_or_b32 v{BF+k}, v{113+2*k}, 16, v{112+2*k}")
    a("s_waitcnt vmcnt(0)")
    for k in range(16):
        a(f"v_xor_b32 v{A63+k}, s37, v{A63+k}")
        a(f"v_and_b32 v{A63+k}, s34, v{A63+k}")
    a("s_nop 1")
    for s in range(4):
        a(mfma(D, A63+4*s, BF+4*s, 0 if s == 0 else None))
    for s in range(4):
        a(mfma(D+16, AF+16+4*s, BF+4*s, str(D) if s == 0 else None))
    for s in range(4):
        a(mfma(D, AF+4*s, BF+4*s))
    a("s_nop 11")
    for k in range(16):
        a(f"v_cvt_pk_bf16_f32 v{AF+k}, v{D+2*k}, v{D+2*k+1}")
    for s in range(4):
        a(f"global_store_dwordx4 v12, {vr(AF+4*s,4)}, s[40:41] offset:{1024*s}{ST1}")
    a("s_endpgm")
    a.label("K1_M")
    a(f"""
    s_lshr_b32 s34, s3, 1                ; A
    s_and_b32 s35, s3, 1                 ; b
    s_lshl_b32 s34, s34, 12
    s_lshl_b32 s35, s35, 12
    v_lshl_add_u32 v7, v3, 7, v6         ; pi(n)*128 + h*16
    v_add_u32 v8, s35, v7
    v_add_u32 v7, s34, v7
    s_waitcnt lgkmcnt(0)
    """)
    for s in range(4):
        a(f"global_load_dwordx4 {vr(A63+4*s,4)}, v9, {WQ} offset:{32*s}")
    for s in range(4):
        a(f"global_load_dwordx4 {vr(B63+4*s,4)}, v9, {WK} offset:{32*s}")
    for s in range(4):
        a(f"global_load_dwordx4 {vr(AF+4*s,4)}, v7, {WQ} offset:{32*s}")
    for s in range(4):
        a(f"global_load_dwordx4 {vr(BF+4*s,4)}, v8, {WK} offset:{32*s}")
    a(f"""
    s_lshr_b32 s34, s34, 1               ; A*2048
    s_add_u32 s38, s34, s35              ; frag [b][s=2A..]
    s_add_u32 s38, s38, {WS_M:#x}
    s_add_u32 s40, s30, s38
    s_addc_u32 s41, s31, 0
    v_mov_b32 v14, {LOG2E_8:#x}
    s_waitcnt vmcnt(8)
    """)
    for k in range(16):
        a(f"v_xor_b32 v{A63+k}, s37, v{A63+k}")
        a(f"v_xor_b32 v{B63+k}, s37, v{B63+k}")
    a("s_nop 1")
    for s in range(4):
        a(mfma(D, A63+4*s, B63+4*s, 0 if s == 0 else None))
    a("s_waitcnt vmcnt(4)")
    for s in range(4):
        a(mfma(D, AF+4*s, B63+4*s))
    a("s_waitcnt vmcnt(0)")
    for s in range(4):
        a(mfma(D, A63+4*s, BF+4*s))
    for s in range(4):
        a(mfma(D, AF+4*s, BF+4*s))
    a("s_nop 11")
    for k in range(8):
        a(f"v_pk_mul_f32 {vr(D+2*k,2)}, {vr(D+2*k,2)}, v[14:15] op_sel_hi:[1,0]")
    for k in range(8):
        a(f"v_cvt_pk_bf16_f32 v{AF+k}, v{D+2*k}, v{D+2*k+1}")
    for s in range(2):
        a(f"global_store_dwordx4 v12, {vr(AF+4*s,4)}, s[40:41] offset:{1024*s}{ST1}")
    a.label("K1_END")
    a("s_endpgm")
    return a, 144
```

```python
from gen import *

K2_GRID = 252
K2_LDS = 163840
L_CNT = 131072
LSTR = 516
L_LIST = 163840 - 40*LSTR
L_INIT = 163840 - 6*4096
L_FLG = L_CNT + 1024
CAP = 240
import os
TS = int(os.environ.get("TS", "0"))
WS_DBG = 0x2000000
def ts_bar(a, helper=False, nobar=False):
    if not TS or TS == 3:
        a("s_barrier"); return
    if helper:
        a("""
        s_memtime s[72:73]
        s_waitcnt lgkmcnt(0)
        s_barrier
        s_memtime s[74:75]
        s_mov_b32 m0, s76
        s_nop 0
        v_writelane_b32 v127, s72, m0
        s_add_u32 s76, s76, 1
        s_waitcnt lgkmcnt(0)
        s_mov_b32 m0, s76
        s_nop 0
        v_writelane_b32 v127, s74, m0
        s_add_u32 s76, s76, 1
        """)
    else:
        a("""
        s_movreld_b32 s64, s60
        s_movreld_b32 s65, s62
        s_add_u32 m0, m0, 2
        s_memtime s[60:61]
        """)
        if nobar: a("s_memrealtime s[62:63]")
        elif TS == 2: a("s_memrealtime s[62:63]\ns_barrier")
        else: a("s_barrier\ns_memtime s[62:63]")
def ts_start(a, helper=False):
    if not TS: return
    if helper:
        a("""
        s_memtime s[72:73]
        s_memrealtime s[74:75]
        s_waitcnt lgkmcnt(0)
        v_writelane_b32 v127, s72, 0
        v_writelane_b32 v127, s74, 1
        s_mov_b32 s76, 2
        """)
    else:
        a("""
        s_memtime s[60:61]
        s_memrealtime s[62:63]
        s_mov_b32 m0, 0
        s_waitcnt lgkmcnt(0)
        """)
def ts_end(a, helper=False):
    if not TS: return
    if helper:
        a("""
        s_memtime s[72:73]
        s_memrealtime s[74:75]
        s_waitcnt lgkmcnt(0)
        s_mov_b32 m0, s76
        s_nop 0
        v_writelane_b32 v127, s72, m0
        s_add_u32 s76, s76, 1
        s_nop 0
        s_mov_b32 m0, s76
        s_nop 0
        v_writelane_b32 v127, s74, m0
        """)
    else:
        a("""
        s_waitcnt lgkmcnt(0)
        s_movreld_b32 s64, s60
        s_movreld_b32 s65, s62
        s_add_u32 m0, m0, 2
        s_waitcnt vmcnt(0)
        s_memtime s[60:61]
        s_memrealtime s[62:63]
        s_waitcnt lgkmcnt(0)
        s_movreld_b32 s64, s60
        s_movreld_b32 s65, s62
        """)
        for k in range(32): a(f"v_writelane_b32 v127, s{64+k}, {k}")
    a(f"""
    s_mul_i32 s60, s2, 12
    s_add_u32 s60, s60, s6
    s_lshl_b32 s60, s60, 8
    s_add_u32 s60, s60, {WS_DBG:#x}
    s_add_u32 s60, s4, s60
    s_addc_u32 s61, s5, 0
    v_mbcnt_lo_u32_b32 v126, -1, 0
    v_mbcnt_hi_u32_b32 v126, -1, v126
    v_lshlrev_b32 v126, 2, v126
    global_store_dword v126, v127, s[60:61]
    """)

EXPM = int(os.environ.get("EXPM", "0"))
SP = 0
STAG = int(os.environ.get("STAG", "8"))
KA, VA, KS, VS = 0, 2, 4, 2
FA, FS = 6, 7
KF, VF = 8, 24
S = [40, 56]
QO, QS = 72, 88
OO, OS = 104, 136

def kread(s, unit):
    u = unit % 10; half, i = divmod(u, 5)
    base = KS if i == 4 else KA
    off = half*32768 + (0 if i == 4 else i*8192) + s*1024
    return f"ds_read_b128 {vr(KF+4*s,4)}, v{base+(s&1)} offset:{off}"

def vread(b, ks, j, unit):
    u = unit % 10; half, i = divmod(u, 5)
    base = VS if i == 4 else VA
    off = half*32768 + (0 if i == 4 else i*8192) + b*2048 + ks*256
    f = VF + 4*(2*ks+b) + 2*j
    return f"ds_read_b64_tr_b16 {vr(f,2)}, v{base+j} offset:{off}"

def qk(s, unit):
    q = QS if unit % 5 == 4 else QO
    return mfma(S[unit & 1], KF+4*s, q+4*s, 0 if s == 0 else None)

def pv(b, ks, unit):
    o = OS if unit % 5 == 4 else OO
    if SP: return f"v_smfmac_f32_32x32x32_bf16 {vr(o+16*b,16)}, {vr(VF+4*(2*ks+b),4)}, {vr(S[unit&1]+8*ks,8)}, v{IDX}"
    return mfma(o+16*b, VF+4*(2*ks+b), S[unit & 1]+8*ks)

def ex(unit, r):
    return f"v_exp_f32 v{S[unit&1]+r}, v{S[unit&1]+r}"
def cv(unit, p):
    s = S[unit & 1]
    return f"v_cvt_pk_bf16_f32 v{s+(p&3)+8*(p>>2)}, v{s+2*p}, v{s+2*p+1}"

def unit_code(u, extra=None, pre=None, post_wait=None, pre_rd=None):
    extra = extra or {}
    pre = pre or {}
    post_wait = post_wait or {}
    pre_rd = pre_rd or {}
    out = []
    for g in range(8):
        out += pre.get(g, [])
        if g == 0: out.append("s_waitcnt lgkmcnt(8)")
        if g == 4: out.append("s_waitcnt lgkmcnt(4)")
        out += post_wait.get(g, [])
        if g < 4:
            out.append(qk(g, u+1))
            rd = [kread(g, u+2)]
        else:
            b, ks = (g-4) & 1, (g-4) >> 1
            out.append(pv(b, ks, u))
            rd = [vread(b, ks, 0, u+1), vread(b, ks, 1, u+1)]
        if SP:
            eu, ep = (u, g+2) if g < 6 else (u+1, g-6)
            if g == 5: out += [ex(eu, 2*ep), ex(eu, 2*ep+1)] + rd
            else: out += [rd[0], ex(eu, 2*ep)] + rd[1:] + [ex(eu, 2*ep+1)]
            out += extra.get(g, [])
            continue
        if g < 5:   eu, ep = u, g+3
        else:       eu, ep = u+1, g-5
        if g < 6:   cu, cp = u, g+2
        else:       cu, cp = u+1, g-6
        out.append(cv(cu, cp))
        out += pre_rd.get(g, [])
        out.append(rd[0])
        out.append(ex(eu, 2*ep))
        out += rd[1:]
        out.append(ex(eu, 2*ep+1))
        out += extra.get(g, [])
    return out


L_QA = 65536
L_QX = 98304
HPRIO = int(os.environ.get("HPRIO", "0"))
APRIO = int(os.environ.get("APRIO", "0"))
ST2 = os.environ.get("ST2", "")

def kaddr(a, d, lane, t0, t1):
    a(f"""
    v_and_b32 v{t0}, 31, v{lane}         ; n
    v_lshrrev_b32 v{t1}, 5, v{lane}      ; h
    v_lshlrev_b32 v{d}, 2, v{t1}
    v_xor_b32 v{d}, v{d}, v{t0}          ; n ^ 4h
    v_lshlrev_b32 v{d}, 4, v{d}
    v_lshl_add_u32 v{d}, v{t1}, 9, v{d}
    """)

def qtask(a, am, ah0, ah1, aw, MF, HF, D):
    for s in range(4):
        a(f"ds_read_b128 {vr(MF+4*s,4)}, v{am} offset:{1024*s}")
        a(f"ds_read_b128 {vr(HF+4*s,4)}, v{ah1 if s&1 else ah0} offset:{1024*s}")
    for s in range(4):
        a(f"s_waitcnt lgkmcnt({6-2*s})")
        a(mfma(D, MF+4*s, HF+4*s, 0 if s == 0 else None))
    a("s_nop 11")
    for k in range(8):
        a(f"v_cvt_pk_bf16_f32 v{MF+k}, v{D+2*k}, v{D+2*k+1}")
        if k == 4: a(f"ds_write_b128 v{aw}, {vr(MF,4)}")
    a(f"ds_write_b128 v{aw}, {vr(MF+4,4)} offset:1024")

def k2():
    a = Asm()
    a(f"""
    s_load_dwordx2 s[4:5], s[0:1], 88
    v_lshrrev_b32 v1, 6, v0
    s_cmp_ge_u32 s2, {K2_GRID}
    s_cbranch_scc1 K2_END
    v_readfirstlane_b32 s6, v1           ; wave
    v_and_b32 v0, 63, v0                 ; lane
    s_lshr_b32 s7, s2, 2                 ; qb
    s_and_b32 s8, s2, 3                  ; split
    v_lshlrev_b32 v40, 4, v0             ; lane*16
    s_mul_i32 s14, s8, {80*4096}
    s_sub_u32 s9, s6, 8                  ; hw
    s_lshl_b32 s15, s9, 13               ; hw*8192
    s_add_u32 s14, s14, s15
    s_lshl_b32 s16, s6, 10
    s_add_u32 s17, s16, {L_QA}
    s_add_u32 s16, s16, {WS_M:#x}
    s_mul_i32 s18, s6, 3072
    s_mul_i32 s19, s7, 20480
    s_add_u32 s19, s19, s18
    s_add_u32 s18, s18, {L_QA + 8192}
    s_add_u32 s20, s14, 1024
    s_add_u32 s21, s15, 1024
    s_mov_b32 s34, {WS_OFFS:#x}
    s_mov_b32 s35, 0x20000
    s_cmp_ge_u32 s6, 8
    s_cselect_b32 s16, s14, s16
    s_cselect_b32 m0, s15, s17
    s_cselect_b32 s19, s20, s19
    s_cselect_b32 s18, s21, s18
    s_waitcnt lgkmcnt(0)
    s_mov_b32 s32, s4
    s_mov_b32 s33, s5
    buffer_load_dwordx4 v40, s[32:35], s16 offen lds
    s_mov_b32 m0, s18
    s_nop 0
    buffer_load_dwordx4 v40, s[32:35], s19 offen lds
    buffer_load_dwordx4 v40, s[32:35], s19 offen offset:1024 lds
    buffer_load_dwordx4 v40, s[32:35], s19 offen offset:2048 lds
    s_cbranch_scc1 K2_HELP
    """)
    ts_start(a)
    a(f"""
    s_and_b32 s9, s6, 3                  ; j
    s_lshr_b32 s14, s6, 2                ; parity
    s_lshl_b32 s18, s14, 12              ; par*4096
    s_lshl_b32 s19, s9, 13               ; j*8192
    s_lshl_b32 s16, s9, 12               ; j*4096
    """)
    if APRIO:
        a(f"""
        s_cmp_eq_u32 s14, 0
        s_cbranch_scc1 K2_NP
        s_setprio {APRIO}
        """)
        a.label("K2_NP")
    kaddr(a, 43, 0, 41, 42)
    a(f"""
    v_bfe_u32 v44, v0, 4, 1              ; G&1
    v_bfe_u32 v45, v0, 1, 1              ; cc>>1
    v_lshl_or_b32 v44, v44, 1, v45       ; c3
    v_bfe_u32 v45, v0, 2, 2              ; r
    v_lshl_or_b32 v45, v42, {3 if SP else 2}, v45
    v_lshlrev_b32 v46, 2, v44
    v_xor_b32 v45, v45, v46
    v_lshlrev_b32 v45, 4, v45
    v_lshl_add_u32 v45, v44, 9, v45
    v_and_b32 v46, 1, v0
    v_lshl_add_u32 v45, v46, 3, v45
    v_add_u32 v{KA}, s18, v43
    v_add_u32 v{VA}, s18, v45
    v_xor_b32 v{KA+1}, 128, v{KA}
    v_xor_b32 v{VA+1}, {64 if SP else 128}, v{VA}
    v_add_u32 v{KS}, s19, v{KA}
    v_add_u32 v{KS+1}, s19, v{KA+1}
    s_or_b32 s21, s19, 0x10000
    s_lshl_b32 s17, s6, 5
    s_add_u32 s17, s17, {L_FLG}
    v_bfe_u32 v{FA}, v40, 4, 2
    v_lshl_add_u32 v{FA}, v{FA}, 2, s17
    v_mov_b32 v{FS}, 1
    s_add_u32 s17, s18, {L_QA}
    v_add_u32 v44, s17, v40
    s_add_u32 s17, s16, {L_QA + 8192}
    v_add_u32 v45, s17, v43
    v_xor_b32 v46, 128, v45
    s_add_u32 s16, s16, {L_QX}
    v_add_u32 v48, s16, v40
    s_lshr_b32 s17, s18, 1
    v_add_u32 v47, s17, v48
    v_add_u32 v49, {L_QX + 4*4096}, v40
    """)
    for r in range(64):
        a(f"v_mov_b32 v{OO+r}, 0")
    a("s_mov_b32 s20, 5")
    a("s_waitcnt vmcnt(0)")
    ts_bar(a)
    qtask(a, 44, 45, 46, 47, KF, VF, S[1])
    a("s_waitcnt lgkmcnt(0)")
    ts_bar(a)
    for s in range(4):
        a(kread(s, 0))
        a(f"ds_read_b128 {vr(QO+4*s,4)}, v48 offset:{1024*s}")
    for s in range(4):
        a(f"ds_read_b128 {vr(QS+4*s,4)}, v49 offset:{1024*s}")
    a("s_waitcnt lgkmcnt(0)")
    for s in range(4):
        a(qk(s, 0)); a(kread(s, 1))
    for ks in range(2):
        for b in range(2):
            a(vread(b, ks, 0, 0)); a(vread(b, ks, 1, 0))
    a("s_nop 3")
    if SP:
        for r in range(4): a(ex(0, r))
    else:
        for r in range(6): a(ex(0, r))
        a(cv(0, 0)); a(cv(0, 1))
    a(".p2align 6")
    a.label("K2_LOOP")
    for u in range(10):
        extra, pre, pw, prd = {}, {}, {}, {}
        if u == 7:
            extra = {4: [f"v_xor_b32 v{KA}, 0x10000, v{KA}"], 5: [f"v_xor_b32 v{KA+1}, 0x10000, v{KA+1}"],
                     6: [f"v_xor_b32 v{KS}, 0x10000, v{KS}"], 7: [f"v_xor_b32 v{KS+1}, 0x10000, v{KS+1}"]}
        if u % 5 in (3, 4):
            m = "s21" if u == 9 else "s19"
            extra = {1: [f"v_xor_b32 v{VA}, {m}, v{VA}"], 2: [f"v_xor_b32 v{VA+1}, {m}, v{VA+1}"]}
        if u == 9:
            extra.update({5: ["s_sub_u32 s20, s20, 1"], 6: ["s_cmp_lg_u32 s20, 0"]})
        if u % 5 == 2:
            extra.setdefault(2, []).append(f"ds_read_b32 v{S[u&1]+4}, v{FA}")
        if u % 5 == 3:
            pw[0] = [f"v_cmp_ge_u32 vcc, v{FS}, v{S[(u-1)&1]+4}"]
            prd[0] = [f"s_cbranch_vccnz K2_SPIN{u}", f"K2_GO{u}:"]
            if TS in (1, 2):
                t = Asm(); ts_bar(t, nobar=True); pre[0] = t.lines
        if u % 5 == 4:
            prd[4] = [f"ds_write_b32 v{FA}, v{FS} offset:16"]
            extra.setdefault(7, []).append(f"v_add_u32 v{FS}, 1, v{FS}")
        for x in unit_code(u, extra, pre, pw, prd): a(x)
    a("s_cbranch_scc1 K2_LOOP")
    a(f"""
    v_mbcnt_lo_u32_b32 v0, -1, 0
    v_mbcnt_hi_u32_b32 v0, -1, v0
    s_lshl_b32 s21, s6, 12               ; w*4096
    s_lshl_b32 s22, s6, 13               ; w*8192
    s_add_u32 s22, s22, 65536
    s_xor_b32 s23, s21, {4*4096}
    s_lshl_b32 s24, s6, 10
    s_add_u32 s24, s24, 65536
    v_and_b32 v5, 7, v0
    v_lshlrev_b32 v5, 5, v5
    v_lshlrev_b32 v0, 4, v0              ; lane*16
    v_add_u32 v1, s21, v0
    v_add_u32 v2, s22, v0
    v_add_u32 v3, s23, v0
    v_add_u32 v4, s24, v0
    v_add_u32 v5, {L_FLG + 16}, v5
    s_mul_i32 s25, s2, {5*8192}
    s_lshl_b32 s26, s9, 13
    s_add_u32 s26, s26, s18              ; j*8192 + par*4096
    s_add_u32 s26, s26, s25
    s_add_u32 s26, s26, {WS_PART:#x}
    s_add_u32 s28, s4, s26
    s_addc_u32 s29, s5, 0
    s_lshl_b32 s27, s6, 10
    s_add_u32 s27, s27, s25
    s_add_u32 s27, s27, {WS_PART + 4*8192:#x}
    s_add_u32 s30, s4, s27
    s_addc_u32 s31, s5, 0
    s_waitcnt lgkmcnt(0)
    """)
    a.label("K2_EPW")
    a(f"""
    ds_read_b32 v9, v5
    s_waitcnt lgkmcnt(0)
    v_cmp_gt_u32 vcc, 9, v9
    s_cbranch_vccz K2_EPG
    s_sleep 2
    s_branch K2_EPW
    """)
    a.label("K2_EPG")
    a(f"""
    s_cmp_eq_u32 s14, 0
    s_cbranch_scc1 K2_EP0
    """)
    for q in range(4): a(f"ds_write_b128 v1, {vr(OO+4*q,4)} offset:{1024*q}")
    for q in range(16): a(f"v_mov_b32 v{KF+q}, v{OO+16+q}")
    a("s_branch K2_EP1")
    a.label("K2_EP0")
    for q in range(4): a(f"ds_write_b128 v1, {vr(OO+16+4*q,4)} offset:{1024*q}")
    for q in range(16): a(f"v_mov_b32 v{KF+q}, v{OO+q}")
    a.label("K2_EP1")
    for q in range(8): a(f"ds_write_b128 v2, {vr(OS+4*q,4)} offset:{1024*q}")
    a("s_waitcnt lgkmcnt(0)")
    ts_bar(a)
    for q in range(4): a(f"ds_read_b128 {vr(40+4*q,4)}, v3 offset:{1024*q}")
    for w in range(8): a(f"ds_read_b128 {vr(72+4*w,4)}, v4 offset:{8192*w}")
    for q in range(4):
        a(f"s_waitcnt lgkmcnt({11-q})")
        a(f"v_pk_add_f32 {vr(KF+4*q,2)}, {vr(KF+4*q,2)}, {vr(40+4*q,2)}")
        a(f"v_pk_add_f32 {vr(KF+4*q+2,2)}, {vr(KF+4*q+2,2)}, {vr(42+4*q,2)}")
        a(f"global_store_dwordx4 v0, {vr(KF+4*q,4)}, s[28:29] offset:{1024*q}{ST2}")
    a("s_waitcnt lgkmcnt(0)")
    for st in (4, 8, 16):
        for w in range(0, 32, 2*st):
            a(f"v_pk_add_f32 {vr(72+w,2)}, {vr(72+w,2)}, {vr(72+w+st,2)}")
            a(f"v_pk_add_f32 {vr(74+w,2)}, {vr(74+w,2)}, {vr(74+w+st,2)}")
    a(f"global_store_dwordx4 v0, {vr(72,4)}, s[30:31]{ST2}")
    ts_end(a)
    a("s_endpgm")
    for u in (3, 8):
        a.label(f"K2_SPIN{u}")
        a(f"""
        s_sleep 1
        ds_read_b32 v{KF}, v{FA}
        s_waitcnt lgkmcnt(0)
        v_cmp_ge_u32 vcc, v{FS}, v{KF}
        s_cbranch_vccnz K2_SPIN{u}
        s_branch K2_GO{u}
        """)

    a.label("K2_HELP")
    EN = 44
    AD = 68
    PR = [16, 128]
    DT = [44, 84]
    CY = [36, 148]
    LA = [9, 10]
    a(f"""
    s_add_u32 m0, s15, 4096
    s_add_u32 s18, s14, 4096
    s_load_dwordx2 s[10:11], s[0:1], 24
    """)
    for k in range(4): a(f"buffer_load_dwordx4 v40, s[32:35], s18 offen offset:{1024*k} lds")
    a("s_setprio 3")
    ts_start(a, True)
    a(f"""
    s_add_u32 s14, s14, 32768
    s_add_u32 s15, s15, 32768
    v_mov_b32 v1, v40                    ; lane*16
    s_lshl_b32 s16, s9, 6
    v_add_u32 v2, s16, v0                ; producer p
    s_lshl_b32 s17, s2, 2
    v_lshl_add_u32 v3, v2, 10, s17       ; p*1024 + b*4
    """)
    def dma(a):
        a(f"s_mov_b32 m0, s15")
        a(f"s_add_u32 s18, s14, 4096")
        for k in range(4): a(f"buffer_load_dwordx4 v1, s[32:35], s14 offen offset:{1024*k} lds")
        a(f"s_add_u32 m0, s15, 4096")
        a(f"s_add_u32 s14, s14, 32768")
        for k in range(4): a(f"buffer_load_dwordx4 v1, s[32:35], s18 offen offset:{1024*k} lds")
        a(f"s_add_u32 s15, s15, 32768")
        a(f"s_and_b32 s15, s15, 0x1ffff")
    srd(a, 36, 4, 5, WS_OFFS, 250*1024)
    a("buffer_load_dword v4, v3, s[36:39], 0 offen")
    kaddr(a, 43, 0, 5, 6)
    a(f"""
    s_lshl_b32 s16, s9, 12
    s_add_u32 s18, s16, {L_QA}
    v_add_u32 v5, s18, v1
    v_add_u32 v6, {L_QA + 8192 + 4*4096}, v43
    v_xor_b32 v7, 128, v6
    s_lshr_b32 s16, s16, 1
    s_add_u32 s16, s16, {L_QX + 4*4096}
    v_add_u32 v8, s16, v1
    v_mov_b32 v36, -1
    v_mov_b32 v37, -1
    v_mov_b32 v38, -1
    v_mov_b32 v39, -1
    v_lshlrev_b32 v9, 4, v2
    v_add_u32 v9, {L_INIT}, v9
    """)
    for k in range(6): a(f"ds_write_b128 v9, v[36:39] offset:{4096*k}")
    a(f"""
    v_lshlrev_b32 v9, 2, v2
    v_add_u32 v9, {L_CNT}, v9
    v_mul_u32_u24 v10, {LSTR}, v2
    v_add_u32 v10, {L_LIST}, v10
    v_mov_b32 v11, 0
    ds_write_b32 v9, v10
    ds_write_b32 v9, v11 offset:1024     ; flags = 0
    s_waitcnt lgkmcnt(0)
    """)
    ts_bar(a, True)
    a(f"""
    s_cmp_ge_u32 s9, 2
    s_cbranch_scc1 K2_NOQ
    """)
    qtask(a, 5, 6, 7, 8, 44, 60, 76)
    a.label("K2_NOQ")
    a(f"""
    s_mul_i32 s24, s2, 80
    v_lshl_add_u32 v6, v0, 1, s24
    """)
    srd(a, 68, 10, 11, 0, N*2)
    a("s_waitcnt vmcnt(0) lgkmcnt(0)")
    ts_bar(a, True)
    dma(a)
    srd(a, 40, 4, 5, WS_ENT, 250*10240)
    a(f"""
    v_mul_u32_u24 v12, 10240, v2         ; p*10240
    v_and_b32 v5, 0xffff, v4
    v_add_u32 v12, v12, v5
    v_lshrrev_b32 v4, 18, v4
    v_and_b32 v14, 7, v0
    s_lshl_b32 s16, s9, 2
    s_add_u32 s16, s16, {L_FLG}
    v_lshl_add_u32 v42, v14, 5, s16
    v_mov_b32 v13, 2
    """)
    def entloads(a):
        for k in range(6):
            a(f"v_cmpx_lt_i32 vcc, {4*k}, v4")
            a(f"buffer_load_dwordx4 {vr(EN+4*k,4)}, v12, s[40:43], 0 offen offset:{16*k}")
        a("s_mov_b64 exec, -1")
    if EXPM: a("v_mov_b32 v4, 0")
    entloads(a)
    a("buffer_load_ushort v41, v6, s[68:71], 0 offen")
    a("s_waitcnt vmcnt(7)")
    a("ds_write_b32 v42, v13")
    dma(a)
    a(f"s_setprio {HPRIO}")
    srd(a, 44, 4, 5, WS_H16, N, stride=128)
    srd(a, 48, 4, 5, WS_AGG, N*128)
    a(f"v_lshlrev_b32 v15, 4, v14")
    for X in range(2):
        for k in range(10): a(f"v_mov_b64 {vr(PR[X]+2*k,2)}, v[14:15]")
    a("s_waitcnt vmcnt(8) lgkmcnt(0)")
    assert L_CNT == 2 << 16
    def sortgrp(g):
        for k in range(8*g, 8*g+8):
            a(f"v_alignbit_b32 v{AD+k}, 2, v{EN+k}, 16")
            a(f"v_cmpx_lt_i32 s[{52+2*(k&7)}:{53+2*(k&7)}], {k}, v4")
            a(f"ds_add_rtn_u32 v{AD+k}, v{AD+k}, v13")
        for k in range(8*g, 8*g+8):
            a(f"s_mov_b64 exec, s[{52+2*(k&7)}:{53+2*(k&7)}]")
            a(f"s_waitcnt lgkmcnt(7)")
            a(f"ds_write_b16 v{AD+k}, v{EN+k}")
    a.label("K2_SORT")
    sortgrp(0)
    a("s_cbranch_execz K2_SORTED")
    sortgrp(1)
    a("s_cbranch_execz K2_SORTED")
    sortgrp(2)
    a(f"""
    s_mov_b64 exec, -1
    v_subrev_u32 v4, 24, v4
    v_add_u32 v12, 96, v12
    v_cmp_lt_i32 vcc, 0, v4
    s_cbranch_vccz K2_SORTED
    s_waitcnt lgkmcnt(0)
    """)
    entloads(a)
    a("s_waitcnt vmcnt(0)")
    a("s_branch K2_SORT")
    a.label("K2_SORTED")
    a(f"""
    s_mov_b64 exec, -1
    s_lshl_b32 s16, s9, 2
    s_add_u32 s16, s16, {L_FLG + 256}
    v_mov_b32 v3, s16
    s_waitcnt lgkmcnt(0)
    ds_write_b32 v3, v13                 ; SORTED[hw]
    v_and_b32 v3, 3, v0
    v_lshlrev_b32 v3, 2, v3
    v_add_u32 v3, {L_FLG + 256}, v3
    v_lshlrev_b32 v6, 2, v0
    v_add_u32 v6, {L_CNT}, v6
    v_mul_u32_u24 v7, {LSTR}, v0
    v_add_u32 v7, {L_LIST}, v7
    s_mov_b32 s19, -1
    s_mov_b32 s20, 0                     ; A remaining
    s_mov_b32 s25, -1
    s_mov_b32 s26, 0
    s_mov_b32 s21, 0
    s_mov_b32 s22, 0
    s_mov_b32 s23, 3
    s_mov_b32 s13, 2                     ; published
    s_mov_b32 s12, 0
    s_mov_b32 s31, 0
    s_mov_b32 s27, 0
    s_mov_b32 s28, 0
    v_lshrrev_b32 v15, 3, v0
    v_lshlrev_b32 v15, 1, v15            ; group*2
    v_add_u32 v15, {L_LIST - 160}, v15
    v_lshlrev_b32 v5, 4, v14             ; c*16 bytes
    v_lshrrev_b32 v8, 4, v0
    v_lshl_add_u32 v5, v8, 2, v5         ; + r*4 bytes
    v_and_b32 v8, 8, v0
    v_lshl_add_u32 v5, v8, 28, v5
    v_mov_b32 v{LA[0]}, v7
    v_mov_b32 v{LA[1]}, v7
    s_mul_i32 s24, s2, {40*128}
    """)
    a.label("K2_PER")
    for X in range(2):
        sI, sR, sC, sD = (19, 20, 27, 77) if X == 0 else (25, 26, 28, 78)
        sIo = 25 if X == 0 else 19
        D = DT[X]; C = CY[X]
        a(f"""
        s_waitcnt vmcnt(10)
        s_cmp_lt_i32 s{sIo}, 0
        s_cbranch_scc0 K2_SV{X}
        s_waitcnt vmcnt(0)
        """)
        a.label(f"K2_SV{X}")
        a(f"""
        s_cmp_ge_u32 s13, s23
        s_cbranch_scc1 K2_PB{X}
        s_cmp_eq_u32 s23, 10
        s_cselect_b32 s13, 11, s23
        v_mov_b32 v11, s13
        ds_write_b32 v42, v11
        """)
        a.label(f"K2_PB{X}")
        a(f"""
        s_cmp_ge_u32 s23, 10
        s_cbranch_scc1 K2_ND{X}
        ds_read_b32 v11, v42 offset:16
        s_sub_u32 s16, s23, 3
        s_max_u32 s16, s16, 1
        s_waitcnt lgkmcnt(0)
        v_cmp_gt_u32 vcc, s16, v11
        s_cbranch_vccnz K2_ND{X}
        s_add_u32 s23, s23, 1
        """)
        dma(a)
        a.label(f"K2_ND{X}")
        if X == 0:
            a(f"""
            s_cmp_lg_u32 s12, 0
            s_cbranch_scc1 K2_RDY
            ds_read_b32 v11, v3
            s_waitcnt lgkmcnt(0)
            v_cmp_eq_u32 vcc, 0, v11
            s_cbranch_vccnz K2_IDLE
            ds_read_b32 v4, v6
            s_mov_b32 s12, 1
            s_mul_i32 s21, s9, 10
            s_add_u32 s22, s21, 10
            s_cmp_ge_u32 s2, 250
            s_cselect_b32 s22, s21, s22
            s_waitcnt lgkmcnt(0)
            v_sub_u32 v4, v4, v7
            v_cmp_lt_u32 vcc, {2*CAP}, v4
            v_lshl_or_b32 v4, v41, 16, v4
            {"s_mov_b32 s22, s21" if EXPM else ""}
            s_cbranch_vccz K2_RDY
            s_mov_b32 s31, 1
            s_mov_b32 s22, s21
            """)
            a.label("K2_RDY")
        a(f"""
        s_mov_b32 s29, s{sI}
        s_mov_b32 s30, s{sR}
        s_mov_b32 s79, s{sD}
        s_cmp_gt_i32 s{sR}, 0
        s_cbranch_scc1 K2_CONT{X}
        s_mov_b32 s{sI}, -1
        s_cmp_ge_u32 s21, s22
        s_cbranch_scc1 K2_CONS{X}
        s_mov_b32 s{sI}, s21
        v_readlane_b32 s{sR}, v4, s21
        s_mul_i32 s16, s21, {LSTR}
        s_add_u32 s21, s21, 1
        v_add_u32 v{LA[X]}, s16, v15
        s_and_b32 s{sD}, s{sR}, 0xffff0000
        s_and_b32 s{sR}, s{sR}, 0xffff
        s_branch K2_RD{X}
        """)
        a.label(f"K2_CONT{X}")
        a(f"v_add_u32 v{LA[X]}, 160, v{LA[X]}")
        a.label(f"K2_RD{X}")
        a(f"s_sub_i32 s{sR}, s{sR}, 160")
        for k in range(10): a(f"ds_read_u16 v{PR[X]+2*k}, v{LA[X]} offset:{160+16*k}")
        a.label(f"K2_CONS{X}")
        a(f"""
        s_cmp_lt_i32 s29, 0
        s_cbranch_scc1 K2_ISS{X}
        s_cmp_le_i32 s30, {128-160}
        s_cbranch_scc1 K2_A8{X}
        """)
        for r in range(4): a(f"v_pk_add_f16 v{D+r}, v{D+r}, v{D+32+r}")
        a(f"""
        s_cmp_le_i32 s30, {144-160}
        s_cbranch_scc1 K2_A8{X}
        """)
        for r in range(4): a(f"v_pk_add_f16 v{D+4+r}, v{D+4+r}, v{D+36+r}")
        a.label(f"K2_A8{X}")
        for st in (16, 8, 4):
            for r in range(st): a(f"v_pk_add_f16 v{D+r}, v{D+r}, v{D+st+r}")
        a(f"""
        s_max_i32 s16, s{sC}, s30
        s_cmp_gt_i32 s16, 0
        s_cbranch_scc1 K2_MC{X}
        """)
        a.label(f"K2_FIN{X}")
        a(f"""
        s_lshl_b32 s29, s29, 7
        v_permlane32_swap_b32 v{D}, v{D+2}
        v_permlane32_swap_b32 v{D+1}, v{D+3}
        v_pk_add_f16 v{D}, v{D}, v{D+2}
        v_pk_add_f16 v{D+1}, v{D+1}, v{D+3}
        s_add_u32 s29, s29, s24
        s_nop 0
        v_permlane16_swap_b32 v{D}, v{D+1}
        v_pk_add_f16 v{D}, v{D}, v{D+1}
        s_nop 1
        v_mov_b32_dpp v{D+1}, v{D} row_ror:8 row_mask:0xf bank_mask:0xf
        v_pk_add_f16 v{D}, v{D}, v{D+1}
        v_fma_mix_f32 v{D+2}, v{D}, s79, 0 op_sel:[0,0,0] op_sel_hi:[1,0,0]
        v_fma_mix_f32 v{D+3}, v{D}, s79, 0 op_sel:[1,0,0] op_sel_hi:[1,0,0]
        v_cvt_pk_bf16_f32 v11, v{D+2}, v{D+3}
        buffer_store_dword v11, v5, s[48:51], s29 offen{ST2}
        """)
        a.label(f"K2_ISS{X}")
        a(f"""
        s_cmp_lt_i32 s{sI}, 0
        s_cbranch_scc1 K2_NXT{X}
        s_waitcnt lgkmcnt(0)
        """)
        for k in range(10):
            a(f"buffer_load_dwordx4 {vr(D+4*k,4)}, {vr(PR[X]+2*k,2)}, s[44:47], 0 idxen offen")
        a.label(f"K2_NXT{X}")
    a(f"""
    s_and_b32 s16, s19, s25
    s_cmp_eq_u32 s16, -1
    s_cbranch_scc0 K2_PER
    s_cmp_eq_u32 s13, 11
    s_cbranch_scc1 K2_HDONE
    """)
    a.label("K2_IDLE")
    a("""
    s_sleep 4
    s_branch K2_PER
    """)
    for X in range(2):
        sC = 27 if X == 0 else 28
        D = DT[X]; C = CY[X]
        a.label(f"K2_MC{X}")
        a(f"""
        s_cmp_eq_u32 s{sC}, 0
        s_cbranch_scc1 K2_MD{X}
        """)
        for r in range(4): a(f"v_pk_add_f16 v{D+r}, v{D+r}, v{C+r}")
        a.label(f"K2_MD{X}")
        a(f"""
        s_mov_b32 s{sC}, 0
        s_cmp_gt_i32 s30, 0
        s_cbranch_scc0 K2_FIN{X}
        s_mov_b32 s{sC}, 1
        """)
        for r in range(4): a(f"v_mov_b32 v{C+r}, v{D+r}")
        a(f"s_branch K2_ISS{X}")
    a.label("K2_HDONE")
    a(f"""
    s_cmp_eq_u32 s31, 0
    s_cbranch_scc0 K2_SLOW
    """)
    a.label("K2_PEREND")
    ts_bar(a, True)
    ts_end(a, True)
    a("s_endpgm")
    a.label("K2_SLOW")
    a(f"""
    s_mul_i32 s21, s9, 10
    s_mul_i32 s22, s9, 2560
    v_lshlrev_b32 v6, 2, v0
    v_add_u32 v6, {L_LIST}, v6
    v_add_u32 v7, s22, v6
    v_mov_b32 v8, 0
    v_lshlrev_b32 v9, 1, v0              ; lane*2
    """)
    for k in range(10): a(f"ds_write_b32 v7, v8 offset:{256*k}")
    srd(a, 44, 4, 5, WS_H16, N*128)
    a(f"""
    s_add_u32 s52, s4, {WS_OFFS:#x}
    s_addc_u32 s53, s5, 0
    s_add_u32 s54, s4, {WS_ENT:#x}
    s_addc_u32 s55, s5, 0
    s_mov_b32 s25, 0                     ; p
    """)
    a.label("K2_SP")
    a(f"""
    s_lshl_b32 s26, s25, 10
    s_add_u32 s26, s26, s17
    s_load_dword s27, s[52:53], s26
    s_mul_i32 s28, s25, 10240
    s_waitcnt lgkmcnt(0)
    s_and_b32 s29, s27, 0xffff
    s_add_u32 s28, s28, s29
    s_lshr_b32 s29, s27, 16
    s_add_u32 s29, s29, s28              ; end
    """)
    a.label("K2_SE")
    a(f"""
    s_cmp_ge_u32 s28, s29
    s_cbranch_scc1 K2_SPN
    s_load_dword s27, s[54:55], s28
    s_add_u32 s28, s28, 4
    s_waitcnt lgkmcnt(0)
    s_lshr_b32 s30, s27, 18
    s_sub_u32 s31, s30, s21
    s_cmp_ge_u32 s31, 10
    s_cbranch_scc1 K2_SE
    s_and_b32 s27, s27, 0xffff
    s_lshl_b32 s27, s27, 7
    v_add_u32 v12, s27, v9
    buffer_load_ushort v10, v12, s[44:47], 0 offen
    s_lshl_b32 s30, s30, 8
    v_add_u32 v11, s30, v6
    ds_read_b32 v13, v11
    s_waitcnt vmcnt(0) lgkmcnt(0)
    v_cvt_f32_f16 v10, v10
    v_add_f32 v10, v10, v13
    ds_write_b32 v11, v10
    s_branch K2_SE
    """)
    a.label("K2_SPN")
    a(f"""
    s_add_u32 s25, s25, 1
    s_cmp_lt_u32 s25, 250
    s_cbranch_scc1 K2_SP
    s_waitcnt lgkmcnt(0)
    s_lshr_b32 s22, s22, 1
    s_add_u32 s24, s24, s22
    v_add_u32 v8, s24, v9
    """)
    for k in range(10): a(f"ds_read_b32 v{16+k}, v7 offset:{256*k}")
    a("s_waitcnt lgkmcnt(0)")
    for k in range(10):
        a(f"v_readlane_b32 s16, v41, s21")
        a(f"s_add_u32 s21, s21, 1")
        a(f"s_lshl_b32 s16, s16, 16")
        a(f"s_nop 1")
        a(f"v_mul_f32 v{16+k}, s16, v{16+k}")
        a(f"v_cvt_pk_bf16_f32 v{16+k}, v{16+k}, v{16+k}")
        a(f"buffer_store_short v{16+k}, v8, s[48:51], 0 offen offset:{128*k}{ST2}")
    a("s_branch K2_PEREND")
    a.label("K2_END")
    a("s_endpgm")
    return a, 168
```

```python
from gen import *

K3_GRID = 313
K3_LDS = 0

def k3():
    a = Asm()
    load_args(a)
    P, AG, XR, W = 16, 144, 176, 192
    a(f"""
    s_cmp_ge_u32 s2, {K3_GRID}
    s_cbranch_scc1 K3_END
    s_mul_i32 s3, s2, 52429
    s_lshr_b32 s3, s3, 18                ; qb = R/5
    s_mul_i32 s4, s3, 5
    s_sub_u32 s4, s2, s4                 ; blk
    s_mul_i32 s5, s3, {4*5*8192}
    s_lshl_b32 s4, s4, 13
    s_add_u32 s5, s5, s4
    s_add_u32 s5, s5, {WS_PART:#x}
    v_lshlrev_b32 v1, 4, v0              ; lane*16
    v_add_u32 v2, 4096, v1
    v_and_b32 v3, 31, v0
    v_lshrrev_b32 v4, 5, v0              ; h
    s_lshl_b32 s6, s2, 5
    v_add_u32 v3, s6, v3                 ; row
    v_lshlrev_b32 v5, 4, v4
    v_lshl_add_u32 v5, v3, 7, v5         ; row*128 + h*16
    v_lshlrev_b32 v6, 1, v5              ; row*256 + h*32
    v_lshlrev_b32 v7, 1, v3              ; row*2
    s_waitcnt lgkmcnt(0)
    """)
    for s in range(4):
        a(f"s_add_u32 s{32+2*s}, s30, s5")
        a(f"s_addc_u32 s{33+2*s}, s31, 0")
        if s < 3: a(f"s_add_u32 s5, s5, {5*8192}")
    for s in range(4):
        for q in range(8):
            a(f"global_load_dwordx4 {vr(P+32*s+4*q,4)}, v{1+q//4}, s[{32+2*s}:{33+2*s}] offset:{1024*(q&3)}")
    srd(a, 40, 30, 31, WS_AGG, N*128)
    srd(a, 48, 8, 9, 0, N*128)
    srd(a, 52, 26, 27, 0, N*128)
    for s in range(4):
        a(f"buffer_load_dwordx4 {vr(AG+4*s,4)}, v5, s[40:43], 0 offen offset:{32*s}")
    a(f"""
    s_add_u32 s56, s30, {WS_W:#x}
    s_addc_u32 s57, s31, 0
    s_add_u32 s58, s30, {WS_W+8192:#x}
    s_addc_u32 s59, s31, 0
    """)
    for m in (1, 0):
        for f in range(8):
            a(f"global_load_dwordx4 {vr(W+32*m+4*f,4)}, v{1+f//4}, s[{56+2*m}:{57+2*m}] offset:{1024*(f&3)}")
    for s in range(4):
        a(f"buffer_load_dwordx4 {vr(XR+4*s,4)}, v5, s[48:51], 0 offen offset:{32*s}")
    a(f"s_waitcnt vmcnt({24+16})")
    for k in range(16): a(f"v_pk_add_f32 {vr(P+2*k,2)}, {vr(P+2*k,2)}, {vr(P+32+2*k,2)}")
    a(f"s_waitcnt vmcnt({24})")
    for k in range(16): a(f"v_pk_add_f32 {vr(P+64+2*k,2)}, {vr(P+64+2*k,2)}, {vr(P+96+2*k,2)}")
    for k in range(15, -1, -1): a(f"v_pk_add_f32 {vr(P+2*k,2)}, {vr(P+2*k,2)}, {vr(P+64+2*k,2)}")
    a(f"""
    v_mov_b32 v10, v{P+31}
    v_mov_b32 v11, v{P+31}
    s_nop 1
    v_permlane32_swap_b32 v10, v11
    v_rcp_f32 v10, v11
    s_nop 0
    """)
    G = P + 32
    for k in range(16): a(f"v_pk_mul_f32 {vr(P+2*k,2)}, {vr(P+2*k,2)}, v[10:11] op_sel_hi:[1,0]")
    for k in range(16): a(f"v_cvt_pk_bf16_f32 v{G+k}, v{P+2*k}, v{P+2*k+1}")
    A = AG
    Y = P + 64
    a(f"s_waitcnt vmcnt(12)")
    for s in range(4):
        for b in range(2):
            a(mfma(Y+16*b, W+32+16*b+4*s, G+4*s, 0 if s == 0 else None))
    a(f"s_waitcnt vmcnt(4)")
    for s in range(4):
        for b in range(2):
            a(mfma(Y+16*b, W+16*b+4*s, A+4*s))
    a("s_mov_b32 s60, 0xffff0000")
    a(f"s_waitcnt vmcnt(0)")
    for k in range(16):
        a(f"v_lshlrev_b32 v{P+2*k}, 16, v{XR+k}")
        a(f"v_and_b32 v{P+2*k+1}, s60, v{XR+k}")
    for k in range(16): a(f"v_pk_add_f32 {vr(Y+2*k,2)}, {vr(Y+2*k,2)}, {vr(P+2*k,2)}")
    for k in range(16): a(f"v_cvt_pk_bf16_f32 v{XR+k}, v{Y+2*k}, v{Y+2*k+1}")
    for s in range(4):
        a(f"buffer_store_dwordx4 {vr(XR+4*s,4)}, v5, s[52:55], 0 offen offset:{32*s}")
    a.label("K3_END")
    a("s_endpgm")
    return a, 256
```

```python
import sys
from gen import *
import build_cfg
out = sys.argv[1] if len(sys.argv) > 1 else f"cdna_kernels/{NAME}.s"
bad = assemble_file(build_cfg.kernels(), out)
print("hazards:", bad)
import chk
chk.check_file(out)
```

```python
from gen import *
import os
KF_GRID = 252
KF_LDS = 163840
L_CNT = 131072
L_FLG = L_CNT + 1024
L_BIN = L_CNT + 2048
L_TAB = L_CNT + 3072
L_AGG = L_CNT + 2048
LSTR = 356
L_LIST = 163840 - 40*LSTR
L_INIT = 163840 - 12288 - 2048
L_QA = 98304
L_HI = L_QA + 8192
L_ES = L_CNT + 4096
L_QS = 49152
L_FB = 32768
CAP = 160
DV, SV = 132, 142
assert L_ES + 10240 <= L_INIT <= L_LIST
WS_OUT = 0x900000
WS_FBN = 0x700000
WS_QST = 0xE00000
TS = int(os.environ.get("TS", "0"))
WS_DBG = 0x2000000
HPRIO = int(os.environ.get("HPRIO", "1"))
SC = " sc1"
ESTR = 11264
BV = os.environ.get('BV', 'F')
BAL = int(os.environ.get('BAL', '1'))
LO = int(os.environ.get('LO', '1'))
AP = int(os.environ.get('AP', '30'))
H16E = int(os.environ.get('H16E', '1'))
MB = int(os.environ.get('MB', '16'))
DSW = int(os.environ.get('DSW', '3'))
SPF = int(os.environ.get('SPF', '2048'))
MPR = int(os.environ.get('MPR', '3'))
MP2 = int(os.environ.get('MP2', '2'))
B1T = int(os.environ.get('B1T', '2'))
B2T = int(os.environ.get('B2T', '1'))
CWX = int(os.environ.get('CWX', '4'))
TMO2 = 1 << 23
FORCEFB = int(os.environ.get('FORCEFB', '0'))
TMO = 1 << 20

TSP = int(os.environ.get("TSP", "0"))
TSC = int(os.environ.get("TSC", "0"))
def stamp(a, k, p=0):
    if not TS: return
    if (p and not TSP) or (TSP and not p and k in (4, 5, 6, 7, 8)): return
    a(f"""
    s_memrealtime s[90:91]
    s_waitcnt lgkmcnt(0)
    s_mov_b32 s{92+k}, s90
    """)
_dn = 0
def ts_end(a, helper=False):
    if not TS: return
    a("s_waitcnt vmcnt(0)")
    stamp(a, 9)
    a("s_mov_b64 exec, -1")
    if TS == 3:
        if not helper: return
        global _dn
        _dn += 1
        DX = int(os.environ.get("DX", "0"))
        a(f"""
        s_lshl_b32 s60, s2, 4
        s_or_b32 s60, s60, s6
        s_cmp_lg_u32 s60, {int(os.environ.get("DWG", "4"))*16 + 8}
        s_cbranch_scc1 DIAG_E{_dn}
        s_sub_u32 s60, s{92+DX if DX >= 0 else 88}, s88
        s_mul_i32 s60, s60, 10
        s_add_u32 s60, s60, 6000
        DIAG_L{_dn}:
        s_memrealtime s[90:91]
        s_waitcnt lgkmcnt(0)
        s_sub_u32 s61, s90, s88
        s_cmp_lt_u32 s61, s60
        s_cbranch_scc1 DIAG_L{_dn}
        DIAG_E{_dn}:
        """)
        return
    if TS == 2:
        m = [(0, 5), (1, 6), (3, 7), (5, 8), (6, 9), (7, 10)] if not helper else [(4, 11), (5, 12), (6, 13), (7, 14), (9, 15)]
        a("s_not_b32 s92, s92")
        a("v_mov_b32 v126, 0")
        a("s_mov_b64 exec, 1")
        for k, w in m:
            a(f"v_mov_b32 v127, s{92+k}")
            a(f"global_atomic_umax v126, v127, s[80:81] offset:{4*w} sc1")
        return
    for k in range(10): a(f"v_writelane_b32 v127, s{92+k}, {k}")
    a(f"""
    s_mul_i32 s60, s2, 12
    s_add_u32 s60, s60, s6
    s_lshl_b32 s60, s60, 8
    s_add_u32 s60, s60, {WS_DBG:#x}
    s_add_u32 s60, s4, s60
    s_addc_u32 s61, s5, 0
    v_mbcnt_lo_u32_b32 v126, -1, 0
    v_mbcnt_hi_u32_b32 v126, -1, v126
    v_lshlrev_b32 v126, 2, v126
    global_store_dword v126, v127, s[60:61]
    """)

KA, VA, KS, VS = 0, 2, 4, 2
FA, FS = 6, 7
KF, VF = 8, 24
S = [40, 56]
QO, QS = 72, 88
OO, OS = 104, 136

J = [0]
def kread(s, unit, base=KA):
    u = unit % 10; half, i = divmod(u, 5)
    if i == 4: return None
    off = half*32768 + ((i + J[0] + 1) & 3)*8192 + s*1024
    return f"ds_read_b128 {vr(KF+4*s,4)}, v{base+(s&1)} offset:{off}"
def vread(b, ks, j, unit):
    u = unit % 10; half, i = divmod(u, 5)
    if i == 4: return None
    off = half*32768 + ((i + J[0] + 1) & 3)*8192 + b*2048 + ks*256
    f = VF + 4*(2*ks+b) + 2*j
    return f"ds_read_b64_tr_b16 {vr(f,2)}, v{VA+j} offset:{off}"
def qk(s, unit):
    q = QS if unit % 5 == 4 else QO
    return mfma(S[unit & 1], KF+4*s, q+4*s, 0 if s == 0 else None)
def pv(b, ks, unit):
    o = OS if unit % 5 == 4 else OO
    return mfma(o+16*b, VF+4*(2*ks+b), S[unit & 1]+8*ks)
def ex(unit, r):
    return f"v_exp_f32 v{S[unit&1]+r}, v{S[unit&1]+r}"
def cv(unit, p):
    s = S[unit & 1]
    return f"v_cvt_pk_bf16_f32 v{s+(p&3)+8*(p>>2)}, v{s+2*p}, v{s+2*p+1}"

def unit_code(u, extra, post_wait, pre_rd):
    out = []
    for g in range(8):
        if g == 0: out.append(f"s_waitcnt lgkmcnt({1 if u % 5 == 4 else 8})")
        if g == 4 and u % 5 != 4: out.append(f"s_waitcnt lgkmcnt({1 if u % 5 == 2 else 4})")
        out += post_wait.get(g, [])
        if g < 4:
            out.append(qk(g, u+1))
            rd = [kread(g, u+2)]
        else:
            b, ks = (g-4) & 1, (g-4) >> 1
            out.append(pv(b, ks, u))
            rd = [vread(b, ks, 0, u+1), vread(b, ks, 1, u+1)]
        if g < 5:   eu, ep = u, g+3
        else:       eu, ep = u+1, g-5
        if g < 6:   cu, cp = u, g+2
        else:       cu, cp = u+1, g-6
        out.append(cv(cu, cp))
        out += pre_rd.get(g, [])
        out.append(rd[0])
        out.append(ex(eu, 2*ep))
        out += rd[1:]
        out.append(ex(eu, 2*ep+1))
        out += extra.get(g, [])
    return [x for x in out if x]

def kvaddr(a, dk, dv, lane, t0, t1, t2):
    a(f"""
    v_and_b32 v{t0}, 31, v{lane}         ; n
    v_lshrrev_b32 v{t1}, 5, v{lane}      ; h
    v_lshlrev_b32 v{dk}, 2, v{t1}
    v_xor_b32 v{dk}, v{dk}, v{t0}
    v_lshlrev_b32 v{dk}, 4, v{dk}
    v_lshl_add_u32 v{dk}, v{t1}, 9, v{dk}
    v_bfe_u32 v{t0}, v{lane}, 4, 1
    v_bfe_u32 v{dv}, v{lane}, 1, 1
    v_lshl_or_b32 v{t0}, v{t0}, 1, v{dv} ; c3
    v_bfe_u32 v{dv}, v{lane}, 2, 2
    v_lshl_or_b32 v{dv}, v{t1}, 2, v{dv} ; key0
    v_lshlrev_b32 v{t2}, 2, v{t0}
    v_xor_b32 v{dv}, v{dv}, v{t2}
    v_lshlrev_b32 v{dv}, 4, v{dv}
    v_lshl_add_u32 v{dv}, v{t0}, 9, v{dv}
    v_and_b32 v{t2}, 1, v{lane}
    v_lshl_add_u32 v{dv}, v{t2}, 3, v{dv}
    """)

def ln_chain(XR, F, T, HB, m63):
    o = []
    for k in range(4):
        o.append(f"v_lshlrev_b32 v{F+2*k}, 16, v{XR+k}")
        o.append(f"v_and_b32 v{F+2*k+1}, s3, v{XR+k}")
    o += [f"v_pk_add_f32 {vr(T,2)}, {vr(F,2)}, {vr(F+2,2)}",
          f"v_pk_add_f32 {vr(T+2,2)}, {vr(F+4,2)}, {vr(F+6,2)}",
          f"v_pk_add_f32 {vr(T,2)}, {vr(T,2)}, {vr(T+2,2)}",
          f"v_add_f32 v{T}, v{T}, v{T+1}"]
    def dsum(r):
        for m in ("quad_perm:[1,0,3,2]", "quad_perm:[2,3,0,1]", "row_half_mirror"):
            o.append(None)
            o.append(f"v_add_f32_dpp v{r}, v{r}, v{r} {m} row_mask:0xf bank_mask:0xf")
    dsum(T)
    o.append(f"v_mul_f32 v{T}, 0xbc800000, v{T}")
    for k in range(4):
        o.append(f"v_pk_add_f32 {vr(F+2*k,2)}, {vr(F+2*k,2)}, {vr(T,2)} op_sel_hi:[1,0]")
    o += [f"v_pk_mul_f32 {vr(T+2,2)}, {vr(F,2)}, {vr(F,2)}",
          f"v_pk_mul_f32 {vr(T+4,2)}, {vr(F+2,2)}, {vr(F+2,2)}",
          f"v_pk_fma_f32 {vr(T+2,2)}, {vr(F+4,2)}, {vr(F+4,2)}, {vr(T+2,2)}",
          f"v_pk_fma_f32 {vr(T+4,2)}, {vr(F+6,2)}, {vr(F+6,2)}, {vr(T+4,2)}",
          f"v_pk_add_f32 {vr(T+2,2)}, {vr(T+2,2)}, {vr(T+4,2)}",
          f"v_add_f32 v{T}, v{T+2}, v{T+3}"]
    dsum(T)
    o += [f"v_mov_b32 v{T+2}, 0x3727c5ac",
          f"v_fmac_f32 v{T+2}, 0x3c800000, v{T}",
          f"v_rsq_f32 v{T}, v{T+2}"]
    for k in range(4):
        o.append(f"v_pk_mul_f32 {vr(F+2*k,2)}, {vr(F+2*k,2)}, {vr(T,2)} op_sel_hi:[1,0]")
    o.append(f"v_cndmask_b32 v{T+2}, v{F+7}, 1.0, {m63}")
    for k in range(3):
        o.append(f"v_cvt_pk_bf16_f32 v{HB+k}, v{F+2*k}, v{F+2*k+1}")
    o.append(f"v_cvt_pk_bf16_f32 v{HB+3}, v{F+6}, v{T+2}")
    return o

def ln16_chain(X0, X1, F, T, m63):
    o = []
    for k in range(8):
        x = (X0 + k) if k < 4 else (X1 + k - 4)
        o.append(f"v_lshlrev_b32 v{F+2*k}, 16, v{x}")
        o.append(f"v_and_b32 v{F+2*k+1}, s3, v{x}")
    P = lambda r: vr(r, 2)
    o += [f"v_pk_add_f32 {P(T)}, {P(F)}, {P(F+2)}", f"v_pk_add_f32 {P(T+2)}, {P(F+4)}, {P(F+6)}",
          f"v_pk_add_f32 {P(T+4)}, {P(F+8)}, {P(F+10)}", f"v_pk_add_f32 {P(T)}, {P(T)}, {P(F+12)}",
          f"v_pk_add_f32 {P(T+2)}, {P(T+2)}, {P(F+14)}", f"v_pk_add_f32 {P(T)}, {P(T)}, {P(T+4)}",
          f"v_pk_add_f32 {P(T)}, {P(T)}, {P(T+2)}", f"v_add_f32 v{T}, v{T}, v{T+1}"]
    def dsum(r):
        for m in ("quad_perm:[1,0,3,2]", "quad_perm:[2,3,0,1]"):
            o.append(None)
            o.append(f"v_add_f32_dpp v{r}, v{r}, v{r} {m} row_mask:0xf bank_mask:0xf")
    dsum(T)
    o.append(f"v_mul_f32 v{T}, 0xbc800000, v{T}")
    for k in range(8): o.append(f"v_pk_add_f32 {P(F+2*k)}, {P(F+2*k)}, {P(T)} op_sel_hi:[1,0]")
    o += [f"v_pk_mul_f32 {P(T+2)}, {P(F)}, {P(F)}", f"v_pk_mul_f32 {P(T+4)}, {P(F+2)}, {P(F+2)}"]
    for k in range(2, 8):
        t = T + 2 + 2*(k & 1)
        o.append(f"v_pk_fma_f32 {P(t)}, {P(F+2*k)}, {P(F+2*k)}, {P(t)}")
    o += [f"v_pk_add_f32 {P(T+2)}, {P(T+2)}, {P(T+4)}", f"v_add_f32 v{T}, v{T+2}, v{T+3}"]
    dsum(T)
    o += [f"v_mov_b32 v{T+2}, 0x3727c5ac", f"v_fmac_f32 v{T+2}, 0x3c800000, v{T}", f"v_rsq_f32 v{T}, v{T+2}"]
    for k in range(8): o.append(f"v_pk_mul_f32 {P(F+2*k)}, {P(F+2*k)}, {P(T)} op_sel_hi:[1,0]")
    o.append(f"v_cndmask_b32 v{F+15}, v{F+15}, 1.0, {m63}")
    for k in range(8): o.append(f"v_cvt_pk_bf16_f32 v{F+k}, v{F+2*k}, v{F+2*k+1}")
    return o

def arrive(a, cnt, vinc, last, vflag, off, t, lab):
    a(f"""
    v_mov_b32 v{t}, {cnt}
    s_mov_b64 exec, 1
    s_waitcnt vmcnt(0)
    ds_add_rtn_u32 v{t+1}, v{t}, v{vinc}
    s_waitcnt lgkmcnt(0)
    v_cmp_eq_u32 vcc, {last}, v{t+1}
    s_cbranch_vccz {lab}
    global_store_dword v{vflag}, v{vinc}, s[4:5] offset:{off}{SC}
    """)
    a.label(lab)
    a("s_mov_b64 exec, -1")

def edge_ld(a):
    for R_, P_ in ((DV, 40), (SV, 38)):
        a(f"""
        global_load_dwordx4 {vr(R_,4)}, v152, s[{P_}:{P_+1}]
        global_load_dwordx4 {vr(R_+4,4)}, v152, s[{P_}:{P_+1}] offset:1024
        global_load_dwordx2 {vr(R_+8,2)}, v153, s[{P_}:{P_+1}] offset:2048
        """)

def pollset(a):
    a(f"""
    s_lshl_b32 s16, s8, 13
    s_add_u32 s16, s16, {WS_FBN:#x}
    v_lshl_add_u32 v2, v9, 7, s16
    s_lshl_b32 s16, s6, 6
    s_sub_u32 s16, {39 + 512 - 256}, s16
    v_mov_b32 v3, s16
    v_mad_u32_u24 v3, v9, 40, v3
    v_and_b32 v5, 255, v3
    s_movk_i32 s16, 103
    v_cmp_gt_u32 s[86:87], s16, v5
    v_cmp_le_i32 vcc, 0, v3
    s_movk_i32 s16, 768
    s_and_b64 s[86:87], s[86:87], vcc
    v_cmp_gt_i32 vcc, s16, v3
    s_movk_i32 s16, 256
    s_and_b64 s[76:77], s[86:87], vcc
    v_cmp_gt_i32 vcc, s16, v3
    s_and_b32 s79, s87, 0x0fffffff
    s_or_b32 s79, s79, 0x08000000
    s_cmp_eq_u32 s8, 3
    s_cselect_b32 s87, s79, s87
    s_and_b32 s78, s86, vcc_lo
    s_mov_b32 s79, 0
    """)

def kf():
    a = Asm()
    XP, SRCP, DSTP, DEGP, WMP, WQP, WKP, WVP, WOP, OUTP, DBGP, WSP = [36+2*i for i in range(12)]
    P2 = lambda r: f"s[{r}:{r+1}]"
    if TS == 3: a("s_memrealtime s[88:89]")
    a(f"""
    s_load_dwordx16 s[36:51], s[0:1], 0
    s_load_dwordx8 s[52:59], s[0:1], 64
    v_lshrrev_b32 v1, 6, v0
    v_and_b32 v9, 63, v0                 ; lane
    s_sub_u32 s2, s2, 1
    v_readfirstlane_b32 s6, v1           ; wave
    s_cbranch_scc1 KF_AUX
    s_cmp_ge_u32 s2, {KF_GRID}
    s_cbranch_scc1 KF_END
    v_lshlrev_b32 v11, 4, v0             ; tid*16
    v_lshlrev_b32 v10, 4, v9             ; lane*16
    v_mov_b64 v[124:125], -1
    v_mov_b64 v[126:127], -1
    v_add_u32 v128, {L_INIT}, v11
    v_mul_u32_u24 v129, {LSTR}, v0
    v_add_u32 v129, {L_LIST}, v129
    v_cmp_gt_u32 vcc, 256, v0
    v_lshlrev_b32 v130, 2, v0
    v_add_u32 v130, {L_CNT}, v130
    v_cndmask_b32 v129, 0, v129, vcc
    ds_write_b128 v128, v[124:127]
    ds_write_b128 v128, v[124:127] offset:2048
    ds_write_b32 v130, v129
    s_lshr_b32 s7, s2, 2                 ; qb
    s_and_b32 s8, s2, 3                  ; split
    s_mul_i32 s19, s7, 20480
    s_mul_i32 s12, s8, 5
    s_lshl_b32 s16, s6, 1
    s_sub_u32 s17, s16, 5
    s_sub_u32 s16, s16, 4                ; kB
    s_cmp_lt_u32 s6, 5
    s_cselect_b32 s16, s6, s16
    s_add_u32 s13, s17, 5
    s_cmp_lt_u32 s17, s12
    s_cselect_b32 s17, s17, s13
    s_add_u32 s13, s16, 5
    s_cmp_lt_u32 s16, s12
    s_cselect_b32 s16, s16, s13          ; piece B
    s_add_u32 s13, s12, s6
    s_cmp_lt_u32 s6, 5
    s_cselect_b32 s17, s13, s17          ; piece A
    s_lshl_b32 s12, s17, 10
    s_add_u32 s12, s12, s19
    s_lshl_b32 s13, s16, 10
    s_add_u32 s13, s13, s19
    v_add_u32 v58, s12, v10              ; x offsets
    v_add_u32 v59, s13, v10
    s_mul_i32 s24, s2, 10240
    s_cmp_ge_u32 s2, 250
    s_cselect_b32 s24, 0, s24
    s_and_b32 s22, s6, 3
    s_mul_i32 s22, s22, 2560
    s_add_u32 s22, s22, s24
    v_add_u32 v152, s22, v10
    v_lshlrev_b32 v153, 3, v9
    v_add_u32 v153, s22, v153
    s_mov_b32 s62, {N*128:#x}
    s_mov_b32 s63, 0x20000
    v_lshrrev_b32 v22, 2, v9
    v_and_b32 v23, 3, v9
    s_mul_i32 s11, s8, 80
    s_add_u32 s11, s11, s6
    s_lshl_b32 s11, s11, 12
    v_lshlrev_b32 v22, 7, v22
    v_lshl_add_u32 v22, v23, 4, v22
    v_add_u32 v22, s11, v22
    s_cmp_ge_u32 s6, 10
    s_cbranch_scc1 KF_MLD
    s_waitcnt lgkmcnt(0)
    s_mov_b32 s60, s{XP}
    s_mov_b32 s61, s{XP+1}
    """)
    if DSW == -1:
        a("s_cmp_ge_u32 s6, 8")
        a("s_cbranch_scc0 KF_NF")
        a("s_setprio 3")
        edge_ld(a)
        a("s_setprio 0")
        a.label("KF_NF")
    a(f"""
    buffer_load_dwordx4 v[12:15], v58, s[60:63], 0 offen
    buffer_load_dwordx4 v[16:19], v59, s[60:63], 0 offen
    """)
    EXL = f"""
    global_load_dwordx4 v[88:91], v22, {P2(XP)} offset:0
    global_load_dwordx4 v[92:95], v22, {P2(XP)} offset:64
    global_load_dwordx4 v[96:99], v22, {P2(XP)} offset:2048
    global_load_dwordx4 v[64:67], v22, {P2(XP)} offset:2112
    """
    def edge_addr(): pass
    def spf():
        if not SPF: return
        a(f"""
        s_cmp_eq_u32 s6, 8
        s_cselect_b32 s22, s{DSTP}, s{SRCP}
        s_cselect_b32 s23, s{DSTP+1}, s{SRCP+1}
        s_add_u32 s22, s22, s24
        s_addc_u32 s23, s23, 0
        """)
        for k in range(0, 10240, SPF): a(f"s_load_dword s83, s[22:23], {k}")
    def edge_loads():
        for R_, P_ in ((DV, DSTP), (SV, SRCP)):
            a(f"""
            global_load_dwordx4 {vr(R_,4)}, v152, {P2(P_)}
            global_load_dwordx4 {vr(R_+4,4)}, v152, {P2(P_)} offset:1024
            global_load_dwordx2 {vr(R_+8,2)}, v153, {P2(P_)} offset:2048
            """)
    a("s_cmp_ge_u32 s6, 8")
    if LO < 1:
        a("s_cbranch_scc1 KF_INIT")
        a(EXL)
    a.label("KF_INIT")
    stamp(a, 0)
    a(f"""
    s_barrier
    s_mov_b32 s4, s{WSP}
    s_mov_b32 s5, s{WSP+1}
    s_mov_b32 s80, s{DBGP}
    s_mov_b32 s81, s{DBGP+1}
    """)
    if LO >= 1:
        a("s_cbranch_scc1 KF_NX")
        a(EXL)
        a.label("KF_NX")
    XA, XB, FA_, FB_, TA, TB, HBA, HBB, HX = 12, 16, 20, 28, 36, 42, 48, 12, 52
    a(f"""
    s_mov_b32 s3, 0xffff0000
    v_lshrrev_b32 v1, 3, v9
    v_and_b32 v2, 7, v9                  ; chunk
    v_and_b32 v3, 3, v9
    v_lshlrev_b32 v3, 2, v3
    v_xor_b32 v3, v3, v1
    v_lshlrev_b32 v3, 4, v3
    v_lshl_add_u32 v3, v2, 9, v3
    s_and_b32 s22, s17, 3
    s_lshl_b32 s22, s22, 7
    s_lshr_b32 s23, s17, 2
    s_lshl_b32 s23, s23, 12
    s_or_b32 s22, s22, s23
    v_xor_b32 v56, s22, v3
    s_and_b32 s22, s16, 3
    s_lshl_b32 s22, s22, 7
    s_lshr_b32 s23, s16, 2
    s_lshl_b32 s23, s23, 12
    s_or_b32 s22, s22, s23
    v_xor_b32 v63, s22, v3
    v_add_u32 v62, {L_HI}, v56
    v_add_u32 v63, {L_HI}, v63
    s_cmp_lt_u32 s12, s62
    s_cselect_b32 s68, 0x80808080, 0
    s_mov_b32 s69, s68
    s_cmp_lt_u32 s13, s62
    s_cselect_b32 s70, 0x80808080, 0
    s_mov_b32 s71, s70
    s_add_u32 s72, s4, s19
    s_addc_u32 s73, s5, 0
    s_cmp_ge_u32 s6, 8
    s_cbranch_scc1 KF_L8
    s_lshl_b32 s16, s2, 7
    s_add_u32 s16, s16, {WS_FBN:#x}
    v_mov_b32 v60, s16
    """)
    srd(a, 64, 4, 5, WS_H16, N*128)
    a(f"""
    s_and_b32 s9, s6, 3                  ; j
    s_lshr_b32 s14, s6, 2                ; parity
    v_and_b32 v1, 31, v9                 ; n
    s_mul_i32 s18, s9, 40
    v_add_u32 v2, s18, v1                ; 40j + n
    v_lshrrev_b32 v3, 3, v1
    v_lshl_add_u32 v3, v3, 5, v1         ; 32(n>>3) + n = 40(n>>3) + (n&7)
    v_add_u32 v3, 32, v3
    v_lshrrev_b32 v1, 5, v9              ; h
    """)
    for src_, d_, d2 in ((2, 69, 70), (3, 57, 61)):
        a(f"""
        v_lshlrev_b32 v4, 2, v1
        v_xor_b32 v4, v4, v{src_}
        v_and_b32 v5, 31, v4
        v_lshrrev_b32 v4, 5, v4
        v_lshlrev_b32 v4, 12, v4
        v_lshl_add_u32 v4, v5, 4, v4
        v_lshl_add_u32 v4, v1, 9, v4
        v_add_u32 v{d_}, {L_HI}, v4
        v_xor_b32 v{d2}, 128, v{d_}
        """)
    a(f"""
    v_add_u32 v68, {L_QA}, v10           ; M frags
    v_mov_b32 v8, 4
    """)
    kvaddr(a, 20, 21, 9, 1, 2, 3)
    a(f"""
    s_lshl_b32 s18, s14, 12              ; par*4096
    s_add_u32 s19, s9, 1
    s_and_b32 s19, s19, 3
    s_lshl_b32 s19, s19, 13
    v_add_u32 v{KA}, s18, v20
    v_add_u32 v{VA}, s18, v21
    v_xor_b32 v{KA+1}, 128, v{KA}
    v_xor_b32 v{VA+1}, 128, v{VA}
    v_add_u32 v{KS}, s19, v{KA}
    v_add_u32 v{KS+1}, s19, v{KA+1}
    s_lshl_b32 s17, s6, 5
    s_add_u32 s17, s17, {L_FLG}
    v_and_b32 v20, 3, v9
    v_lshl_add_u32 v{FA}, v20, 2, s17
    v_mov_b32 v{FS}, 1
    s_mov_b32 s20, 5
    v_lshrrev_b32 v71, 2, v9
    v_lshlrev_b32 v21, 2, v20
    v_xor_b32 v71, v71, v21
    v_lshlrev_b32 v71, 4, v71
    v_lshl_add_u32 v71, v20, 9, v71
    s_lshl_b32 s17, s6, 12
    v_add_u32 v71, s17, v71
    s_mov_b32 s74, 0x88888888
    s_mov_b32 s75, s74
    s_mul_i32 s25, s2, 20480
    s_add_u32 s25, s25, {WS_OUT:#x}
    s_lshl_b32 s26, s9, 12
    s_lshr_b32 s27, s18, 1
    s_add_u32 s26, s26, s27              ; j*4096 + par*2048
    s_add_u32 s26, s26, s25
    s_add_u32 s28, s4, s26
    s_addc_u32 s29, s5, 0
    s_add_u32 s25, s25, 16384
    s_add_u32 s30, s4, s25
    s_addc_u32 s31, s5, 0
    """)
    for r in range(32): a(f"v_mov_b64 {vr(OO+2*r,2)}, 0")
    a(f"""
    s_cmp_lt_u32 s6, 5
    s_cbranch_scc0 KF_LW
    s_setprio 3
    """)
    a.label("KF_LW")
    a("s_waitcnt vmcnt(5)")
    stamp(a, 1)
    def emit(ch):
        for x in ch:
            a("s_nop 1" if x is None else x)
            if x and x.startswith("v_rsq"): a("s_nop 0")
    emit(ln_chain(XA, FA_, TA, HBA, "s[68:69]"))
    a(f"""
    s_cbranch_scc0 KF_NP
    global_store_dwordx4 v56, {vr(HBA,4)}, s[72:73]{SC}
    s_setprio 0
    """)
    for k in range(4): a(f"v_cvt_pk_f16_f32 v{HX+k}, v{FA_+2*k}, v{FA_+2*k+1}")
    a(f"""
    s_waitcnt vmcnt(5)
    s_branch KF_NP1
    """)
    a.label("KF_NP")
    a("s_waitcnt vmcnt(4)")
    a.label("KF_NP1")
    a(f"ds_write_b128 v62, {vr(HBA,4)}")
    emit(ln_chain(XB, FB_, TB, HBB, "s[70:71]"))
    stamp(a, 4, 1)
    a(f"""
    ds_write_b128 v63, {vr(HBB,4)}
    s_cmp_eq_u32 s2, 251
    s_cbranch_scc1 KF_PAD
    """)
    a.label("KF_SG")
    a(f"""
    s_cmp_lt_u32 s6, 5
    s_waitcnt vmcnt(1)
    s_cbranch_scc1 KF_X1
    s_waitcnt vmcnt(0)
    """)
    a.label("KF_X1")
    stamp(a, 6, 1)
    c0, c1 = ln16_chain(88, 92, 20, 12, "s[74:75]"), ln16_chain(96, 64, 36, 88, "s[74:75]")
    for i, (x, y) in enumerate(zip(c0, c1)):
        if i == AP:
            a(f"""
            s_cbranch_scc0 KF_X2
            v_mov_b32 v18, {L_FLG + 296}
            s_mov_b64 exec, 1
            s_waitcnt vmcnt(0)
            ds_add_rtn_u32 v19, v18, v8
            s_mov_b64 exec, -1
            buffer_store_dwordx4 {vr(HX,4)}, v58, s[64:67], 0 offen{SC}
            KF_X2:
            """)
        if i == AP + 1: stamp(a, 7, 1)
        if i == AP + 9:
            a(f"""
            s_cbranch_scc0 KF_X3
            s_waitcnt lgkmcnt(0)
            v_readfirstlane_b32 s16, v19
            s_mov_b64 exec, 1
            s_cmp_eq_u32 s16, 20
            s_cbranch_scc0 KF_X4
            global_store_dword v60, v8, s[4:5]{SC}
            KF_X4:
            s_mov_b64 exec, -1
            KF_X3:
            """)
        if x is None: a("s_nop 0")
        else: a(x); a(y)
        if i == len(c0) - 5:
            a(f"ds_write_b128 v71, v[20:23]")
            a(f"ds_write_b128 v71, v[36:39] offset:256")
    a(f"""
    ds_write_b128 v71, v[24:27] offset:2048
    ds_write_b128 v71, v[40:43] offset:2304
    """)
    stamp(a, 8, 1)
    a(f"""
    s_waitcnt lgkmcnt(0)
    s_barrier
    """)
    stamp(a, 2)
    if BAL == 1: a("s_setprio 2")
    MF = 8
    for s in range(4):
        a(f"ds_read_b128 {vr(MF+4*s,4)}, v68 offset:{1024*s}")
        a(f"ds_read_b128 {vr(QO+4*s,4)}, v{70 if s&1 else 69} offset:{1024*s}")
    for s in range(4): a(f"ds_read_b128 {vr(MF+16+4*s,4)}, v68 offset:{4096+1024*s}")
    for s in range(4):
        a(f"s_waitcnt lgkmcnt({10-s})")
        a(mfma(S[0], MF+4*s, QO+4*s, 0 if s == 0 else None))
        a(f"ds_read_b128 {vr(QS+4*s,4)}, v{61 if s&1 else 57} offset:{1024*s}")
    for s in range(4):
        a(f"s_waitcnt lgkmcnt({7-s})")
        a(mfma(S[1], MF+16+4*s, QO+4*s, 0 if s == 0 else None))
    a("s_nop 3")
    for k in range(8): a(f"v_cvt_pk_bf16_f32 v{QO+k}, v{S[0]+2*k}, v{S[0]+2*k+1}")
    a("s_waitcnt lgkmcnt(0)")
    for s in range(4):
        a(mfma(S[0], MF+4*s, QS+4*s, 0 if s == 0 else None))
        J[0] = 3
        a(kread(s, 0, KS))
        if s == 0: a("s_nop 0")
        for k in range(2*s, 2*s+2): a(f"v_cvt_pk_bf16_f32 v{QO+8+k}, v{S[1]+2*k}, v{S[1]+2*k+1}")
    for s in range(4): a(mfma(S[1], MF+16+4*s, QS+4*s, 0 if s == 0 else None))
    a(f"""
    v_mov_b32 v24, {L_FLG + 316}
    s_mov_b64 exec, 1
    s_waitcnt vmcnt(0)
    ds_add_u32 v24, v{FS}
    s_mov_b64 exec, -1
    s_nop 3
    """)
    for k in range(8): a(f"v_cvt_pk_bf16_f32 v{QS+k}, v{S[0]+2*k}, v{S[0]+2*k+1}")
    stamp(a, 5)
    stamp(a, 3)
    if TSC: a("s_memtime s[86:87]\ns_mov_b32 s96, 0\ns_mov_b32 s85, 0\ns_mov_b32 s84, 0")
    a(f"""
    s_cmp_eq_u32 s9, 1
    s_cbranch_scc1 KF_V_1
    s_cmp_eq_u32 s9, 2
    s_cbranch_scc1 KF_V_2
    s_cmp_eq_u32 s9, 3
    s_cbranch_scc1 KF_V_3
    """)
    a0 = a
    for jj in range(4):
        J[0] = jj
        class W:
            def __call__(self, x): a0(x.replace("_@", f"_{jj}"))
            def label(self, x): a0.label(x.replace("_@", f"_{jj}"))
        a = W()
        a.label("KF_V_@")
        a(f"s_waitcnt lgkmcnt(0)")
        for s in range(4):
            a(qk(s, 0)); a(kread(s, 1))
            for k in range(2*s, 2*s+2): a(f"v_cvt_pk_bf16_f32 v{QS+8+k}, v{S[1]+2*k}, v{S[1]+2*k+1}")
        for ks in range(2):
            for b in range(2):
                a(vread(b, ks, 0, 0)); a(vread(b, ks, 1, 0))
        a("s_nop 1")
        for r in range(6): a(ex(0, r))
        a(cv(0, 0)); a(cv(0, 1))
        a(".p2align 6")
        a.label("KF_LOOP_@")
        for u in range(10):
            extra, pw, prd = {}, {}, {}
            if u == 7:
                extra = {0: [f"v_xor_b32 v{KA}, 0x10000, v{KA}"], 1: [f"v_xor_b32 v{KA+1}, 0x10000, v{KA+1}"]}
            if u == 8:
                extra = {5: [f"v_xor_b32 v{VA}, 0x10000, v{VA}"], 6: [f"v_xor_b32 v{VA+1}, 0x10000, v{VA+1}"]}
            if u == 9:
                extra.update({5: ["s_sub_u32 s20, s20, 1"], 6: ["s_cmp_lg_u32 s20, 0"]})
            if u % 5 == 2:
                extra.setdefault(2, []).append(f"ds_read_b32 v{S[u&1]+4}, v{FA}")
            if u % 5 == 3:
                pw[0] = [f"v_cmp_ge_u32 vcc, v{FS}, v{S[(u-1)&1]+4}"]
                prd[0] = [f"s_cbranch_vccnz KF_SPIN{u}_@", f"KF_GO{u}_@:"]
                if TS == 1 and u == 3 and not TSP and not TSC:
                    prd[0] += ["s_cmp_eq_u32 s20, 5", "s_cbranch_scc0 KF_TS3_@", "s_memrealtime s[90:91]", "s_waitcnt lgkmcnt(0)", "s_mov_b32 s96, s90", "KF_TS3_@:"]
            if u % 5 == 3:
                prd[4] = [f"ds_write_b32 v{FA}, v{FS} offset:16"]
                extra.setdefault(7, []).append(f"v_add_u32 v{FS}, 1, v{FS}")
            if BAL == 1 and u == 0:
                extra.setdefault(1, []).extend([f"s_cmp_eq_u32 s20, {B1T}", "s_cbranch_scc0 KF_BL0_@", "s_setprio 1", "KF_BL0_@:"])
            if BAL == 1 and u == 5:
                extra.setdefault(1, []).extend([f"s_cmp_eq_u32 s20, {B2T}", "s_cbranch_scc0 KF_BL5_@", "s_setprio 0", "KF_BL5_@:"])
            if BAL == 2 and u in (0, 5):
                extra.setdefault(1, []).extend([f"s_cmp_eq_u32 s14, {int(u == 5)}", "s_setprio 0", f"s_cbranch_scc0 KF_BL{u}_@", "s_setprio 1", f"KF_BL{u}_@:"])
            if BAL == 3:
                if u in (0, 4, 7): extra.setdefault(1, []).append(f"s_setprio {2 - (0, 4, 7).index(u)}")
            if BAL == 4:
                extra.setdefault(0, []).extend([f"s_cmp_eq_u32 s14, {u & 1}", "s_setprio 0", f"s_cbranch_scc0 KF_BL{u}_@", "s_setprio 1", f"KF_BL{u}_@:"])
            for x in unit_code(u, extra, pw, prd): a(x)
        a("s_cbranch_scc1 KF_LOOP_@")
        if jj < 3: a("s_branch KF_LE")
    a = a0
    a.label("KF_LE")
    if TSC: a("s_memtime s[90:91]\ns_waitcnt lgkmcnt(0)\ns_sub_u32 s93, s90, s86\ns_mov_b32 s94, s84\ns_mov_b32 s95, s85")
    stamp(a, 6)
    a(f"""
    s_setprio 2
    v_mbcnt_lo_u32_b32 v0, -1, 0
    v_mbcnt_hi_u32_b32 v0, -1, v0
    s_lshl_b32 s21, s6, 12               ; w*4096
    s_lshl_b32 s22, s6, 13               ; w*8192
    s_add_u32 s22, s22, 65536
    s_xor_b32 s23, s21, {4*4096}
    s_lshl_b32 s24, s6, 10
    s_add_u32 s24, s24, 65536
    v_and_b32 v5, 7, v0
    v_lshlrev_b32 v5, 5, v5
    v_lshlrev_b32 v0, 4, v0              ; lane*16
    v_add_u32 v1, s21, v0
    v_add_u32 v2, s22, v0
    v_add_u32 v3, s23, v0
    v_add_u32 v4, s24, v0
    v_add_u32 v5, {L_FLG + 16}, v5
    s_lshr_b32 s25, s6, 1
    s_lshl_b32 s25, s25, 10
    s_and_b32 s26, s6, 1
    s_lshl_b32 s26, s26, 3
    s_add_u32 s25, s25, s26
    v_add_u32 v6, s25, v0
    s_waitcnt lgkmcnt(0)
    """)
    a.label("KF_EPW")
    a(f"""
    ds_read_b32 v9, v5
    s_waitcnt lgkmcnt(0)
    v_cmp_gt_u32 vcc, 9, v9
    s_cbranch_vccz KF_EPG
    s_sleep 2
    s_branch KF_EPW
    """)
    a.label("KF_EPG")
    a(f"""
    s_cmp_eq_u32 s14, 0
    s_cbranch_scc1 KF_EP0
    """)
    for q in range(4): a(f"ds_write_b128 v1, {vr(OO+4*q,4)} offset:{1024*q}")
    for q in range(8): a(f"v_mov_b64 {vr(KF+2*q,2)}, {vr(OO+16+2*q,2)}")
    a("s_branch KF_EP1")
    a.label("KF_EP0")
    for q in range(4): a(f"ds_write_b128 v1, {vr(OO+16+4*q,4)} offset:{1024*q}")
    for q in range(8): a(f"v_mov_b64 {vr(KF+2*q,2)}, {vr(OO+2*q,2)}")
    a.label("KF_EP1")
    for q in range(8): a(f"ds_write_b128 v2, {vr(OS+4*q,4)} offset:{1024*q}")
    a("s_waitcnt lgkmcnt(0)")
    a("s_barrier")
    stamp(a, 7)
    for q in range(4): a(f"ds_read_b128 {vr(40+4*q,4)}, v3 offset:{1024*q}")
    for w in range(8): a(f"ds_read_b128 {vr(136+4*w,4)}, v4 offset:{8192*w}")
    for q in range(4):
        a(f"s_waitcnt lgkmcnt({11-q})")
        a(f"v_pk_add_f32 {vr(KF+4*q,2)}, {vr(KF+4*q,2)}, {vr(40+4*q,2)}")
        a(f"v_pk_add_f32 {vr(KF+4*q+2,2)}, {vr(KF+4*q+2,2)}, {vr(42+4*q,2)}")
        a(f"v_cvt_pk_bf16_f32 v{24+2*q}, v{KF+4*q}, v{KF+4*q+1}")
        a(f"v_cvt_pk_bf16_f32 v{25+2*q}, v{KF+4*q+2}, v{KF+4*q+3}")
        a(f"v_min_u32 v{24+2*q}, -2, v{24+2*q}")
        a(f"v_min_u32 v{25+2*q}, -2, v{25+2*q}")
        if q & 1: a(f"global_store_dwordx4 v0, {vr(24+4*(q>>1),4)}, s[28:29] offset:{1024*(q>>1)}{SC}")
    for st_, wt in ((4, None), (8, None), (16, None)):
        for w in range(0, 32, 2*st_):
            if st_ == 4: a(f"s_waitcnt lgkmcnt({6 - w//4})")
            a(f"v_pk_add_f32 {vr(136+w,2)}, {vr(136+w,2)}, {vr(136+w+st_,2)}")
            a(f"v_pk_add_f32 {vr(138+w,2)}, {vr(138+w,2)}, {vr(138+w+st_,2)}")
    a(f"""
    v_cvt_pk_bf16_f32 v136, v136, v137
    v_cvt_pk_bf16_f32 v137, v138, v139
    v_min_u32 v136, -2, v136
    v_min_u32 v137, -2, v137
    global_store_dwordx2 v6, v[136:137], s[30:31]{SC}
    s_cmp_lg_u32 s9, s8
    s_cbranch_scc1 KF_NQ
    s_lshl_b32 s16, s14, 2
    s_add_u32 s16, s16, {L_FLG + 304}
    v_mov_b32 v3, s16
    s_cmp_eq_u32 s14, 0
    s_cbranch_scc1 KF_Q0
    """)
    for s in range(4): a(f"ds_write_b128 v0, {vr(QS+4*s,4)} offset:{L_QS+4096+1024*s}")
    a("s_branch KF_Q1")
    a.label("KF_Q0")
    for s in range(4): a(f"ds_write_b128 v0, {vr(QO+4*s,4)} offset:{L_QS+1024*s}")
    a.label("KF_Q1")
    a(f"ds_write_b32 v3, v{FS}")
    a("s_waitcnt lgkmcnt(0)")
    a.label("KF_NQ")
    stamp(a, 8)
    ts_end(a)
    a("s_endpgm")
    for u in ("3_0", "8_0", "3_1", "8_1", "3_2", "8_2", "3_3", "8_3"):
        a.label(f"KF_SPIN{u}")
        if TSC:
            a(f"""
            s_add_u32 s96, s96, 1
            s_sub_u32 s83, 5, s20
            s_mul_i32 s83, s83, 6
            s_lshl_b32 s83, 1, s83
            s_add_u32 s{84 if u[0] == '3' else 85}, s{84 if u[0] == '3' else 85}, s83
            """)
        a(f"""
        s_sleep 1
        ds_read_b32 v{KF}, v{FA}
        s_waitcnt lgkmcnt(0)
        v_cmp_ge_u32 vcc, v{FS}, v{KF}
        s_cbranch_vccnz KF_SPIN{u}
        s_branch KF_GO{u}
        """)

    a.label("KF_L8")
    edge_addr()
    if DSW == 0: edge_loads()
    spf()
    pollset(a)
    a(f"s_waitcnt vmcnt({6 if DSW == 0 else 0})")
    if not SPF: stamp(a, 1)
    if DSW == 1: edge_loads()
    for x, y in zip(ln_chain(XA, FA_, TA, HBA, "s[68:69]"), ln_chain(XB, FB_, TB, 52, "s[70:71]")):
        if x is None: a("s_nop 0")
        else: a(x); a(y)
    a(f"""
    ds_write_b128 v62, {vr(HBA,4)}
    ds_write_b128 v63, v[52:55]
    """)
    if DSW == 2: edge_loads()
    a("s_branch KF_B2M")
    a.label("KF_PAD")
    a(f"""
    s_cmp_lt_u32 s6, 5
    s_cbranch_scc0 KF_SG
    s_lshl_b32 s16, s6, 12
    s_add_u32 s16, s16, 20480
    v_add_u32 v40, s16, v10
    v_mov_b64 v[36:37], 0
    v_mov_b64 v[38:39], 0
    """)
    for k in range(4): a(f"global_store_dwordx4 v40, v[36:39], s[72:73] offset:{1024*k}{SC}")
    a("s_nop 1")
    a("s_branch KF_SG")
    B63, AF, BF, D0, D1 = 28, 44, 76, 92, 108
    L_W = 65536
    a.label("KF_MLD")
    a(f"""
    s_setprio {MPR}
    v_lshrrev_b32 v1, 4, v9
    v_xor_b32 v1, v1, v9
    v_lshlrev_b32 v4, 4, v1
    v_xor_b32 v5, 64, v4
    s_and_b32 s16, s6, 1
    s_lshl_b32 s17, s16, 13
    s_add_u32 s17, s17, {L_W}
    s_mov_b32 m0, s17
    s_mov_b32 s62, 8192
    s_movk_i32 s18, 4096
    s_cmp_eq_u32 s16, 1
    s_waitcnt lgkmcnt(0)
    s_cselect_b32 s60, s{WKP}, s{WQP}
    s_cselect_b32 s61, s{WKP+1}, s{WQP+1}
    """)
    if DSW == -1: edge_ld(a)
    for k in range(4): a(f"buffer_load_dwordx4 v{4+(k&1)}, s[60:63], 0 offen offset:{1024*k} lds")
    a("s_add_u32 m0, s17, 4096")
    a("s_nop 0")
    for k in range(4): a(f"buffer_load_dwordx4 v{4+(k&1)}, s[60:63], s18 offen offset:{1024*k} lds")
    stamp(a, 0)
    a(f"""
    s_setprio 0
    s_barrier
    s_mov_b32 s4, s{WSP}
    s_mov_b32 s5, s{WSP+1}
    s_mov_b32 s80, s{DBGP}
    s_mov_b32 s81, s{DBGP+1}
    """)
    edge_addr()
    if DSW == 0: edge_loads()
    a(f"""
    v_and_b32 v1, 31, v9
    v_lshrrev_b32 v2, 5, v9
    """)
    pi_calc(a, 3, 1, 4)
    a(f"""
    v_bfe_u32 v4, v3, 1, 3
    v_xor_b32 v4, v4, v2
    v_lshlrev_b32 v4, 4, v4
    v_lshl_add_u32 v4, v3, 7, v4
    v_add_u32 v20, {L_W}, v4
    v_xor_b32 v21, 32, v20
    v_xor_b32 v22, 64, v20
    v_xor_b32 v23, 96, v20
    s_lshl_b32 s17, s16, 12
    v_add_u32 v24, s17, v20
    v_add_u32 v25, s17, v21
    v_add_u32 v26, s17, v22
    v_add_u32 v27, s17, v23
    v_lshlrev_b32 v2, 4, v2
    v_sub_u32 v12, {L_W + 8192 + 63*128 + 16}, v2
    s_mov_b32 s3, 0x80008000
    s_add_u32 s17, s17, {L_QA}
    v_add_u32 v14, s17, v10
    v_mov_b32 v16, {LOG2E_8:#x}
    s_lshl_b32 s16, s16, 2
    s_add_u32 s16, s16, {L_FLG + 320}
    v_mov_b32 v18, s16
    v_xor_b32 v13, 4, v18
    """)
    pollset(a)
    E6 = 6 if DSW == 0 else 0
    a(f"""
    s_setprio {MP2}
    s_waitcnt vmcnt({E6})
    ds_write_b32 v18, v18
    KF_MS:
    ds_read_b32 v19, v13
    s_waitcnt lgkmcnt(0)
    v_cmp_eq_u32 vcc, 0, v19
    s_cbranch_vccz KF_MG
    s_sleep 1
    s_branch KF_MS
    KF_MG:
    """)
    stamp(a, 1)
    for s in range(4):
        a(f"ds_read_b128 {vr(BF+4*s,4)}, v{24+s} offset:8192")
        a(f"ds_read_b128 {vr(AF+16+4*s,4)}, v{20+s} offset:4096")
    for s in range(4): a(f"ds_read_b128 {vr(B63+4*s,4)}, v12 offset:{96-32*s}")
    if DSW == 1: edge_loads()
    for s in range(4):
        a(f"s_waitcnt lgkmcnt({10-s})")
        a(mfma(D1, AF+16+4*s, BF+4*s, 0 if s == 0 else None))
        a(f"ds_read_b128 {vr(AF+4*s,4)}, v{20+s}")
    a(f"s_waitcnt lgkmcnt(4)")
    for k in range(16): a(f"v_xor_b32 v{B63+k}, s3, v{B63+k}")
    a("s_waitcnt lgkmcnt(0)")
    for s in range(4): a(mfma(D1, AF+16+4*s, B63+4*s))
    for s in range(4): a(mfma(D0, AF+4*s, BF+4*s, 0 if s == 0 else None))
    for s in range(4): a(mfma(D0, AF+4*s, B63+4*s))
    a(f"""
    s_nop 3
    v_mul_f32 v18, v16, v{D1+15}
    v_mul_f32 v20, v16, v{D1+15}
    s_nop 1
    v_permlane32_swap_b32 v18, v20
    """)
    for A_, Dx in ((1, D1), (0, D0)):
        for k in range(8): a(f"v_pk_fma_f32 {vr(Dx+2*k,2)}, {vr(Dx+2*k,2)}, v[16:17], v[20:21] op_sel_hi:[1,0,0] neg_lo:[0,0,1] neg_hi:[0,0,1]")
        for k in range(8): a(f"v_cvt_pk_bf16_f32 v{Dx+k}, v{Dx+2*k}, v{Dx+2*k+1}")
        for s in range(2): a(f"ds_write_b128 v14, {vr(Dx+4*s,4)} offset:{2048*A_+1024*s}")
    if DSW == 2: edge_loads()
    stamp(a, 4, 1)
    a(f"""
    s_cmp_eq_u32 s6, 10
    s_cbranch_scc1 KF_B2M
    v_and_b32 v12, 3, v9
    v_lshlrev_b32 v12, 2, v12
    s_mov_b32 s82, {TMO}
    s_lshl_b32 s17, s2, 7
    s_add_u32 s17, s17, {WS_FBN:#x}
    v_mov_b32 v13, s17
    v_mov_b32 v8, 4
    v_mov_b32 v18, {L_FLG + 296}
    s_setprio 0
    KF_CW1:
    global_load_dword v19, v12, s[80:81]{SC}
    s_waitcnt vmcnt(0)
    v_cmp_eq_u32 vcc, 0, v19
    s_cbranch_vccz KF_CG1
    s_sub_u32 s82, s82, 1
    s_cbranch_scc1 KF_CG1
    ds_read_b32 v19, v18
    s_waitcnt lgkmcnt(0)
    v_cmp_le_u32 vcc, {CWX}, v19
    s_cbranch_vccnz KF_B2A
    s_sleep 2
    s_branch KF_CW1
    KF_CG1:
    s_mov_b64 exec, 1
    ds_write_b32 v18, v8 offset:36
    ds_add_rtn_u32 v19, v18, v8
    s_waitcnt lgkmcnt(0)
    v_cmp_eq_u32 vcc, 20, v19
    s_cbranch_vccz KF_A1
    global_store_dword v13, v8, s[4:5]{SC}
    KF_A1:
    s_mov_b64 exec, -1
    """)
    a.label("KF_B2M")
    stamp(a, 8, 1)
    a(f"""
    v_mov_b32 v18, {L_FLG + 296}
    s_waitcnt lgkmcnt(0)
    s_barrier
    KF_CL:
    ds_read_b32 v19, v18 offset:36
    s_waitcnt lgkmcnt(0)
    v_cmp_eq_u32 vcc, 0, v19
    s_cbranch_vccz KF_CE
    s_sleep 1
    s_branch KF_CL
    KF_B2A:
    s_barrier
    KF_CW2:
    global_load_dword v19, v12, s[80:81]{SC}
    s_waitcnt vmcnt(0)
    v_cmp_eq_u32 vcc, 0, v19
    s_cbranch_vccz KF_CG2
    s_sub_u32 s82, s82, 1
    s_cbranch_scc1 KF_CG2
    s_sleep 2
    s_branch KF_CW2
    KF_CG2:
    s_mov_b64 exec, 1
    ds_write_b32 v18, v8 offset:36
    ds_add_rtn_u32 v19, v18, v8
    s_waitcnt lgkmcnt(0)
    v_cmp_eq_u32 vcc, 20, v19
    s_cbranch_vccz KF_A2
    global_store_dword v13, v8, s[4:5]{SC}
    KF_A2:
    s_mov_b64 exec, -1
    KF_CE:
    s_mov_b64 exec, s[76:77]
    global_load_dword v3, v2, s[4:5]{SC}
    s_mov_b64 exec, -1
    """)
    stamp(a, 2)
    from kf_help import helper
    helper(a)
    a.label("KF_END")
    a("s_endpgm")
    return a, 168
```

```python
from kf import *

SPRIO = int(os.environ.get("SPRIO", "3"))
SY0 = int(os.environ.get("SY0", "1"))
BSL = int(os.environ.get("BSL", "6"))
PSL = int(os.environ.get("PSL", "2"))
FSL = int(os.environ.get("FSL", "4"))
FSL0 = int(os.environ.get("FSL0", "10"))

def helper(a):
    EN = 44
    AD = 68
    PR = [16, 128]
    DT = [44, 84]
    CY = [36, 148]
    LA = [9, 10]
    DG = 152
    def dma(a):
        a(f"s_mov_b32 m0, s15")
        a(f"s_add_u32 s18, s14, 4096")
        for k in range(4): a(f"buffer_load_dwordx4 v1, s[32:35], s14 offen offset:{1024*k}{SC} lds")
        a(f"s_add_u32 m0, s15, 4096")
        a(f"s_add_u32 s14, s14, 32768")
        for k in range(4): a(f"buffer_load_dwordx4 v1, s[32:35], s18 offen offset:{1024*k}{SC} lds")
        a(f"s_add_u32 s15, s15, 32768")
        a(f"s_and_b32 s15, s15, 0x1ffff")
    def service(a, X):
        a(f"""
        s_cmp_ge_u32 s13, s23
        s_cbranch_scc1 KF_PB{X}
        s_cmp_eq_u32 s23, 10
        s_cselect_b32 s13, 11, s23
        v_mov_b32 v11, s13
        ds_write_b32 v42, v11
        """)
        a.label(f"KF_PB{X}")
        if X in ("W", "A", "B", "C"):
            a("s_cmp_lg_u64 s[86:87], 0")
            a(f"s_cbranch_scc1 KF_ND{X}")
        a(f"""
        s_cmp_ge_u32 s23, 10
        s_cbranch_scc1 KF_ND{X}
        ds_read_b32 v11, v42 offset:16
        s_sub_u32 s16, s23, 3
        s_waitcnt lgkmcnt(0)
        v_cmp_gt_u32 vcc, s16, v11
        s_cbranch_vccnz KF_ND{X}
        s_add_u32 s23, s23, 1
        """)
        dma(a)
        a.label(f"KF_ND{X}")

    a.label("KF_HELP")
    AV, RV, PX, OFV = 44, 54, 88, 64
    a(f"""
    s_setprio 3
    s_sub_u32 s9, s6, 8                  ; hw
    v_mov_b32 v0, v9                     ; lane
    v_mov_b32 v1, v10                    ; lane*16
    s_mul_i32 s16, s9, 3072
    s_min_u32 s16, s16, 8192
    s_add_u32 s17, s16, {L_ES}
    v_add_u32 v71, s17, v1
    s_mul_i32 s24, s2, {ESTR}
    s_add_u32 s24, s24, s16
    s_add_u32 s24, s24, {WS_ENT:#x}
    v_add_u32 v72, s24, v1
    s_mov_b32 s82, {TMO}
    s_mul_i32 s14, s8, {80*4096}
    s_lshl_b32 s15, s9, 13
    s_add_u32 s15, s15, 32768
    s_add_u32 s14, s14, s15
    s_mov_b32 s32, s4
    s_mov_b32 s33, s5
    s_mov_b32 s34, {320*4096:#x}
    s_mov_b32 s35, 0x20000
    v_and_b32 v14, 7, v0
    s_lshl_b32 s16, s9, 2
    s_add_u32 s16, s16, {L_FLG}
    v_lshl_add_u32 v42, v14, 5, s16
    s_lshl_b32 s16, s2, 7
    s_add_u32 s16, s16, {WS_FBN:#x}
    v_mov_b32 v40, s16
    v_mov_b32 v13, 2
    v_mov_b32 v7, {L_FLG + 288}
    v_mov_b32 v8, 4
    v_mov_b32 v15, 1
    v_add_u32 v70, {L_BIN}, v1
    s_andn2_b32 s86, s86, s76
    s_waitcnt vmcnt(0)
    """)
    stamp(a, 5, 1)
    def pol():
        a(f"""
        s_mov_b64 exec, s[76:77]
        global_load_dword v3, v2, s[4:5]{SC}
        s_mov_b64 exec, -1
        """)
    def upd():
        a(f"""
        v_cmp_eq_u32 vcc, 0, v3
        s_sub_u32 s82, s82, 1
        s_cselect_b32 s82, 0, s82
        s_cselect_b32 s76, 0, s76
        s_and_b32 s76, s76, vcc_lo
        """)
    def sync(off, n, lab):
        a(f"""
        s_mov_b64 exec, 1
        s_waitcnt lgkmcnt(0)
        ds_add_rtn_u32 v4, v7, v15 offset:{off}
        s_waitcnt lgkmcnt(0)
        v_cmp_eq_u32 vcc, {n-1}, v4
        s_cbranch_vccnz {lab}G
        {lab}:
        s_sleep 1
        ds_read_b32 v4, v7 offset:{off}
        s_waitcnt lgkmcnt(0)
        v_cmp_eq_u32 vcc, {n}, v4
        s_cbranch_vccz {lab}
        {lab}G:
        s_mov_b64 exec, -1
        """)
    a.label("KF_Z1")
    upd()
    a("s_and_b32 s17, s76, s78")
    a("s_cbranch_scc0 KF_Z2")
    a(f"s_sleep {PSL}")
    pol()
    a("s_waitcnt vmcnt(0)")
    a("s_branch KF_Z1")
    a.label("KF_Z2")
    dma(a)
    stamp(a, 4)
    a("s_cmp_eq_u32 s76, 0")
    a("s_cbranch_scc1 KF_Z6")
    a.label("KF_Z5")
    pol()
    a("s_waitcnt vmcnt(0)")
    a("ds_write_b32 v42, v13")
    upd()
    a("s_cbranch_scc0 KF_Z6")
    a(f"s_sleep {PSL}")
    a("s_branch KF_Z5")
    a.label("KF_Z6")
    dma(a)
    a("s_waitcnt vmcnt(8)")
    a("ds_write_b32 v42, v13")
    if SY0: sync(40, 4, "KF_Y0")
    edge_ld(a)
    a(f"""
    s_mov_b64 exec, s[86:87]
    global_load_dword v9, v2, s[4:5]{SC}
    s_mov_b64 exec, -1
    v_mov_b32 v11, 3
    s_waitcnt vmcnt(7)
    ds_write_b32 v42, v11                ; FULL = 3
    """)
    a(f"""
    KF_Z3:
    ds_read_b32 v4, v7 offset:28
    s_waitcnt lgkmcnt(0)
    v_cmp_gt_u32 vcc, 8, v4
    s_cbranch_vccz KF_Z4
    s_sleep 1
    s_branch KF_Z3
    KF_Z4:
    """)
    dma(a)
    a(f"""
    s_waitcnt vmcnt(8)
    v_cmp_eq_u32 vcc, 0, v9
    s_and_b64 s[86:87], s[86:87], vcc
    """)
    stamp(a, 1, 1)
    for k in range(10):
        a(f"v_mul_u32_u24 v{AV+k}, 52429, v{DV+k}")
        a(f"v_lshrrev_b32 v{AV+k}, 19, v{AV+k}")
        a(f"v_and_b32 v{AV+k}, 0x3fc, v{AV+k}")
        a(f"v_mad_i32_i24 v{DV+k}, v{AV+k}, -10, v{DV+k}")
        a(f"v_add_u32 v{AV+k}, {L_BIN}, v{AV+k}")
        a(f"ds_add_rtn_u32 v{RV+k}, v{AV+k}, v8")
    for k in range(10):
        a(f"v_lshl_or_b32 v{SV+k}, v{DV+k}, 18, v{SV+k}")
    a(f"""
    s_mov_b32 s23, 4
    s_mov_b32 s13, 3
    """)
    sync(24, 4, "KF_Y1")
    stamp(a, 6, 1)
    a(f"ds_read_b128 {vr(PX,4)}, v70")
    for k in range(10): a(f"v_add_u32 v{RV+k}, {L_ES}, v{RV+k}")
    c0, t1, t2, tot, sc, st = PX, PX+4, PX+5, PX+6, PX+7, PX+8
    a(f"""
    s_waitcnt lgkmcnt(0)
    v_add_u32 v{t1}, v{c0}, v{c0+1}
    v_add_u32 v{t2}, v{t1}, v{c0+2}
    v_add_u32 v{tot}, v{t2}, v{c0+3}
    v_mov_b32 v{sc}, v{tot}
    """)
    dp = ["row_shr:1 row_mask:0xf bank_mask:0xf bound_ctrl:0", "row_shr:2 row_mask:0xf bank_mask:0xf bound_ctrl:0",
          "row_shr:4 row_mask:0xf bank_mask:0xf bound_ctrl:0", "row_shr:8 row_mask:0xf bank_mask:0xf bound_ctrl:0",
          "row_bcast:15 row_mask:0xa bank_mask:0xf", "row_bcast:31 row_mask:0xc bank_mask:0xf"]
    for i, m in enumerate(dp):
        a("s_nop 1")
        a(f"v_add_u32_dpp v{sc}, v{sc}, v{sc} {m}")
    a(f"""
    v_sub_u32 v{st}, v{sc}, v{tot}
    v_add_u32 v{st+1}, v{st}, v{c0}
    v_add_u32 v{st+2}, v{st}, v{t1}
    v_add_u32 v{st+3}, v{st}, v{t2}
    ds_write_b128 v70, {vr(st,4)} offset:1024
    """)
    for k in range(10): a(f"ds_read_b32 v{DV+k}, v{AV+k} offset:1024")
    for k in range(4): a(f"v_lshl_or_b32 v{OFV+k}, v{c0+k}, 16, v{st+k}")
    for k in range(10):
        a(f"s_waitcnt lgkmcnt(9)")
        a(f"v_add_u32 v{DV+k}, v{DV+k}, v{RV+k}")
        a(f"ds_write_b32 v{DV+k}, v{SV+k}")
    a(f"ds_write_b128 v70, {vr(OFV,4)} offset:{L_ES + 10240 - L_BIN}")
    a("s_waitcnt vmcnt(0)")
    service(a, "A")
    sync(28, 12, "KF_Y2")
    stamp(a, 3)
    for k in range(3): a(f"ds_read_b128 {vr(44+4*k,4)}, v71 offset:{1024*k}")
    a(f"""
    """)
    a("s_cmp_eq_u32 s23, 4")
    a("s_cbranch_scc0 KF_NDB")
    service(a, "B")
    a(f"""
    s_cmp_ge_u32 s2, 250
    s_waitcnt lgkmcnt(0)
    s_cbranch_scc1 KF_NG
    """)
    for k in range(3): a(f"global_store_dwordx4 v72, {vr(44+4*k,4)}, s[4:5] offset:{1024*k}{SC}")
    a.label("KF_NG")
    a(f"""
    s_lshl_b32 s16, s9, 6
    v_add_u32 v8, s16, v0                ; producer p
    s_lshl_b32 s17, s2, 2
    v_mul_u32_u24 v12, {ESTR}, v8
    s_add_u32 s17, s17, 10240
    v_add_u32 v3, s17, v12
    s_mul_i32 s24, s2, 80
    s_mul_i32 s16, s9, 20
    s_add_u32 s16, s16, s24
    v_lshrrev_b32 v6, 5, v0
    v_lshl_add_u32 v6, v6, 1, s16
    v_lshlrev_b32 v5, 7, v8
    v_add_u32 v5, {WS_FBN:#x}, v5
    s_movk_i32 s83, {KF_GRID}
    v_cmp_gt_u32 s[84:85], s83, v8
    s_mov_b32 s13, s23
    v_mov_b32 v11, s23
    s_cmp_ge_u32 s2, 250
    s_cbranch_scc1 KF_NW
    s_waitcnt vmcnt(3)
    ds_write_b32 v42, v11
    KF_NW:
    s_waitcnt vmcnt(0)
    ds_write_b32 v42, v11
    s_mov_b64 exec, 1
    ds_add_rtn_u32 v4, v7, v13
    s_waitcnt lgkmcnt(0)
    v_cmp_eq_u32 vcc, 6, v4
    s_cbranch_vccz KF_NA
    global_store_dword v40, v13, s[4:5] offset:4{SC}
    KF_NA:
    s_mov_b64 exec, -1
    """)
    stamp(a, 7, 1)
    service(a, "C")
    a(f"s_setprio {SPRIO}")
    stamp(a, 5)
    srd(a, 68, 42, 43, 0, N*2)
    srd(a, 40, 4, 5, WS_ENT, 250*ESTR)
    srd(a, 44, 4, 5, WS_H16, N, stride=128)
    a(f"v_lshlrev_b32 v15, 4, v14")
    for X in range(2):
        for k in range(10): a(f"v_mov_b64 {vr(PR[X]+2*k,2)}, v[14:15]")
    for k in range(3): a(f"v_mov_b64 {vr(DG+2*k,2)}, 0")
    for k in range(5): a(f"buffer_load_short_d16_hi v{DG+k}, v6, s[68:71], 0 offen offset:{4*k}")
    a(f"""
    s_mul_i32 s16, s9, 1280
    s_add_u32 s16, s16, {L_AGG}
    v_lshl_add_u32 v41, v0, 2, s16
    """)
    a.label("KF_BW")
    a(f"""
    s_mov_b64 exec, s[86:87]
    s_cbranch_execz KF_BX
    global_load_dword v9, v2, s[4:5]{SC}
    KF_BX:
    s_mov_b64 exec, s[84:85]
    global_load_dword v4, v5, s[4:5] offset:4{SC}
    s_waitcnt vmcnt(0)
    v_cmp_eq_u32 s[84:85], 0, v4
    s_mov_b64 exec, -1
    v_cmp_eq_u32 vcc, 0, v9
    s_and_b64 s[86:87], s[86:87], vcc
    """)
    service(a, "W")
    a(f"""
    s_or_b64 vcc, s[84:85], s[86:87]
    s_cbranch_scc0 KF_BR
    s_sub_u32 s82, s82, 1
    s_cbranch_scc1 KF_TO
    s_sleep {BSL}
    s_branch KF_BW
    """)
    a.label("KF_TO")
    a(f"""
    s_mov_b32 s82, 0
    s_mov_b32 s42, 0
    """)
    a.label("KF_BR")
    stamp(a, 6)
    a(f"""
    buffer_load_dword v4, v3, s[40:43], 0 offen{SC}
    s_waitcnt vmcnt(0)
    v_and_b32 v5, 0xffff, v4
    v_add_u32 v12, v12, v5
    v_lshrrev_b32 v4, 18, v4
    """)
    def entloads(a):
        for k in range(6):
            a(f"v_cmpx_lt_i32 vcc, {4*k}, v4")
            a(f"buffer_load_dwordx4 {vr(EN+4*k,4)}, v12, s[40:43], 0 offen offset:{16*k}{SC}")
        a("s_mov_b64 exec, -1")
    a.label("KF_EL")
    entloads(a)
    a("s_waitcnt vmcnt(0)")
    service(a, "E")
    assert L_CNT == 2 << 16
    def sortgrp(g):
        for k in range(8*g, 8*g+8):
            a(f"v_alignbit_b32 v{AD+k}, 2, v{EN+k}, 16")
            a(f"v_cmpx_lt_i32 s[{52+2*(k&7)}:{53+2*(k&7)}], {k}, v4")
            a(f"ds_add_rtn_u32 v{AD+k}, v{AD+k}, v13")
        for k in range(8*g, 8*g+8):
            a(f"s_mov_b64 exec, s[{52+2*(k&7)}:{53+2*(k&7)}]")
            a(f"s_waitcnt lgkmcnt(7)")
            a(f"ds_write_b16 v{AD+k}, v{EN+k}")
    sortgrp(0)
    a("s_cbranch_execz KF_SORTED")
    sortgrp(1)
    a("s_cbranch_execz KF_SORTED")
    sortgrp(2)
    a(f"""
    s_mov_b64 exec, -1
    v_subrev_u32 v4, 24, v4
    v_add_u32 v12, 96, v12
    v_cmp_lt_i32 vcc, 0, v4
    s_waitcnt lgkmcnt(0)
    s_cbranch_vccnz KF_EL
    """)
    a.label("KF_SORTED")
    a(f"""
    s_mov_b64 exec, -1
    s_lshl_b32 s16, s9, 2
    s_add_u32 s16, s16, {L_FLG + 256}
    v_mov_b32 v43, s16
    s_waitcnt lgkmcnt(0)
    ds_write_b32 v43, v13                ; SORTED[hw]
    v_and_b32 v3, 3, v0
    v_lshlrev_b32 v3, 2, v3
    v_add_u32 v3, {L_FLG + 256}, v3
    v_lshlrev_b32 v6, 2, v0
    v_add_u32 v6, {L_CNT}, v6
    v_mul_u32_u24 v7, {LSTR}, v0
    v_add_u32 v7, {L_LIST}, v7
    s_mov_b32 s19, -1
    s_mov_b32 s20, 0                     ; A remaining
    s_mov_b32 s25, -1
    s_mov_b32 s26, 0
    s_mov_b32 s21, 0
    s_mov_b32 s22, 0
    s_mov_b32 s12, 0
    s_mov_b32 s31, 0
    s_mov_b32 s27, 0
    s_mov_b32 s28, 0
    v_lshrrev_b32 v15, 3, v0
    v_lshlrev_b32 v15, 1, v15            ; group*2
    v_add_u32 v15, {L_LIST - 160}, v15
    v_lshlrev_b32 v5, 4, v14             ; c*16 bytes
    v_lshrrev_b32 v8, 4, v0
    v_lshl_add_u32 v5, v8, 2, v5         ; + r*4 bytes
    v_add_u32 v5, {L_AGG}, v5
    v_mov_b32 v{LA[0]}, v7
    v_mov_b32 v{LA[1]}, v7
    s_lshl_b32 s16, s2, 2
    s_add_u32 s16, s16, s9
    s_mul_i32 s16, s16, 5120
    s_add_u32 s16, s16, {WS_OUT + 1024:#x}
    v_add_u32 v8, s16, v1
    v_mov_b64 v[36:37], -1
    v_mov_b64 v[38:39], -1
    """)
    for k in range(5): a(f"global_store_dwordx4 v8, v[36:39], s[4:5] offset:{1024*k-1024}{SC}")
    a(f"s_setprio {HPRIO}")
    if not TSP: stamp(a, 1)
    a.label("KF_PER")
    for X in range(2):
        sI, sR, sC, sD = (19, 20, 27, 77) if X == 0 else (25, 26, 28, 78)
        sIo = 25 if X == 0 else 19
        D = DT[X]; C = CY[X]
        a(f"""
        s_waitcnt vmcnt(10)
        s_cmp_lt_i32 s{sIo}, 0
        s_cbranch_scc0 KF_SV{X}
        s_waitcnt vmcnt(0)
        """)
        a.label(f"KF_SV{X}")
        service(a, X)
        if X == 0:
            a(f"""
            s_cmp_lg_u32 s12, 0
            s_cbranch_scc1 KF_RDY
            ds_read_b32 v11, v3
            s_waitcnt lgkmcnt(0)
            v_cmp_eq_u32 vcc, 0, v11
            s_cbranch_vccnz KF_IDLE
            ds_read_b32 v4, v6
            s_mov_b32 s12, 1
            s_mul_i32 s21, s9, 10
            s_add_u32 s22, s21, 10
            s_cmp_ge_u32 s2, 250
            s_cselect_b32 s22, s21, s22
            s_waitcnt lgkmcnt(0)
            v_sub_u32 v4, v4, v7
            v_cmp_lt_u32 vcc, {2*CAP}, v4
            s_cbranch_vccz KF_RDY
            s_mov_b32 s31, 1
            s_mov_b32 s22, s21
            """)
            a.label("KF_RDY")
        a(f"""
        s_mov_b32 s29, s{sI}
        s_mov_b32 s30, s{sR}
        s_cmp_gt_i32 s{sR}, 0
        s_cbranch_scc1 KF_CONT{X}
        s_mov_b32 s{sI}, -1
        s_cmp_ge_u32 s21, s22
        s_cbranch_scc1 KF_CONS{X}
        s_mov_b32 s{sI}, s21
        v_readlane_b32 s{sR}, v4, s21
        s_mul_i32 s16, s21, {LSTR}
        s_add_u32 s21, s21, 1
        v_add_u32 v{LA[X]}, s16, v15
        s_branch KF_RD{X}
        """)
        a.label(f"KF_CONT{X}")
        a(f"v_add_u32 v{LA[X]}, 160, v{LA[X]}")
        a.label(f"KF_RD{X}")
        a(f"s_sub_i32 s{sR}, s{sR}, 160")
        for k in range(10): a(f"ds_read_u16 v{PR[X]+2*k}, v{LA[X]} offset:{160+16*k}")
        a.label(f"KF_CONS{X}")
        a(f"""
        s_cmp_lt_i32 s29, 0
        s_cbranch_scc1 KF_ISS{X}
        s_cmp_le_i32 s30, {128-160}
        s_cbranch_scc1 KF_A8{X}
        """)
        for r in range(4): a(f"v_pk_add_f16 v{D+r}, v{D+r}, v{D+32+r}")
        a(f"""
        s_cmp_le_i32 s30, {144-160}
        s_cbranch_scc1 KF_A8{X}
        """)
        for r in range(4): a(f"v_pk_add_f16 v{D+4+r}, v{D+4+r}, v{D+36+r}")
        a.label(f"KF_A8{X}")
        for st in (16, 8, 4):
            for r in range(st): a(f"v_pk_add_f16 v{D+r}, v{D+r}, v{D+st+r}")
        a(f"""
        s_max_i32 s16, s{sC}, s30
        s_cmp_gt_i32 s16, 0
        s_cbranch_scc1 KF_MC{X}
        """)
        a.label(f"KF_FIN{X}")
        a(f"""
        s_lshl_b32 s29, s29, 7
        v_permlane32_swap_b32 v{D}, v{D+2}
        v_permlane32_swap_b32 v{D+1}, v{D+3}
        v_pk_add_f16 v{D}, v{D}, v{D+2}
        v_pk_add_f16 v{D+1}, v{D+1}, v{D+3}
        v_add_u32 v8, s29, v5
        s_nop 0
        v_permlane16_swap_b32 v{D}, v{D+1}
        v_pk_add_f16 v{D}, v{D}, v{D+1}
        s_nop 1
        v_mov_b32_dpp v{D+1}, v{D} row_ror:8 row_mask:0xf bank_mask:0xf
        v_pk_add_f16 v11, v{D}, v{D+1}
        ds_write_b32 v8, v11
        """)
        a.label(f"KF_ISS{X}")
        a(f"""
        s_cmp_lt_i32 s{sI}, 0
        s_cbranch_scc1 KF_NXT{X}
        s_waitcnt lgkmcnt(0)
        """)
        for k in range(10):
            a(f"buffer_load_dwordx4 {vr(D+4*k,4)}, {vr(PR[X]+2*k,2)}, s[44:47], 0 idxen offen{SC}")
        a.label(f"KF_NXT{X}")
    a(f"""
    s_and_b32 s16, s19, s25
    s_cmp_eq_u32 s16, -1
    s_cbranch_scc0 KF_PER
    s_cmp_eq_u32 s13, 11
    s_cbranch_scc1 KF_HDONE
    """)
    a.label("KF_IDLE")
    a("""
    s_sleep 4
    s_branch KF_PER
    """)
    for X in range(2):
        sC = 27 if X == 0 else 28
        D = DT[X]; C = CY[X]
        a.label(f"KF_MC{X}")
        a(f"""
        s_cmp_eq_u32 s{sC}, 0
        s_cbranch_scc1 KF_MD{X}
        """)
        for r in range(4): a(f"v_pk_add_f16 v{D+r}, v{D+r}, v{C+r}")
        a.label(f"KF_MD{X}")
        a(f"""
        s_mov_b32 s{sC}, 0
        s_cmp_gt_i32 s30, 0
        s_cbranch_scc0 KF_FIN{X}
        s_mov_b32 s{sC}, 1
        """)
        for r in range(4): a(f"v_mov_b32 v{C+r}, v{D+r}")
        a(f"s_branch KF_ISS{X}")
    a.label("KF_HDONE")
    a(f"""
    s_cmp_eq_u32 s31, 0
    s_cbranch_scc0 KF_SLOW
    s_setprio {SPRIO}
    """)
    for k in range(5): a(f"ds_read_b32 v{16+k}, v41 offset:{256*k}")
    for k in range(5):
        a(f"""
        s_waitcnt lgkmcnt(4)
        v_fma_mix_f32 v22, v{16+k}, v{DG+k}, 0 op_sel:[0,0,0] op_sel_hi:[1,0,0]
        v_fma_mix_f32 v23, v{16+k}, v{DG+k}, 0 op_sel:[1,0,0] op_sel_hi:[1,0,0]
        v_cvt_pk_bf16_f32 v{16+k}, v22, v23
        ds_write_b32 v41, v{16+k} offset:{256*k}
        """)
    WV_, WM_, Y0, AG, XR, ACC, PD = 16, 32, 48, 64, 80, 88, 104
    a.label("KF_FS")
    stamp(a, 7)
    a(f"""
    s_waitcnt vmcnt(0) lgkmcnt(0)
    ds_write_b32 v43, v13 offset:16      ; GDONE[hw]
    v_mov_b32 v7, {L_FLG + 292}
    s_mov_b64 exec, 1
    ds_add_rtn_u32 v4, v7, v13
    s_waitcnt lgkmcnt(0)
    v_cmp_eq_u32 vcc, 6, v4
    s_cbranch_vccz KF_NB
    global_store_dword v40, v13, s[4:5] offset:8{SC}
    """)
    a.label("KF_NB")
    a(f"""
    s_mov_b64 exec, -1
    s_cmp_ge_u32 s2, 250
    s_cbranch_scc0 KF_F2
    s_barrier
    """)
    ts_end(a, True)
    a("s_endpgm")
    a.label("KF_F2")
    a(f"""
    s_load_dwordx2 s[48:49], s[0:1], 0
    s_load_dwordx2 s[52:53], s[0:1], 72
    s_lshr_b32 s19, s9, 1                ; cb
    s_and_b32 s20, s9, 1                 ; ob
    v_and_b32 v4, 31, v0                 ; n
    v_lshrrev_b32 v5, 5, v0              ; h
    v_and_b32 v6, 7, v0
    v_add_u32 v7, 32, v6
    s_lshl_b32 s16, s8, 3
    v_add_u32 v6, s16, v6
    s_cmp_eq_u32 s19, 1
    s_cselect_b64 vcc, -1, 0
    s_cselect_b32 s21, 4, s8             ; block
    s_cselect_b32 s22, 8, 64
    v_cndmask_b32 v7, v4, v7, vcc
    v_cndmask_b32 v6, v4, v6, vcc
    v_lshl_add_u32 v6, v5, 5, v6
    v_lshlrev_b32 v6, 4, v6
    v_lshlrev_b32 v8, 4, v5
    v_lshl_add_u32 v8, v7, 7, v8         ; row*128 + h*16
    v_add_u32 v9, {L_AGG}, v8
    s_mul_i32 s16, s2, 5120
    s_lshl_b32 s17, s20, 6
    s_add_u32 s16, s16, s17
    v_add_u32 v8, s16, v8
    v_cmp_le_u32 vcc, s22, v4
    v_mov_b32 v10, 0x80000000
    v_and_b32 v12, 3, v0
    v_cndmask_b32 v10, v8, v10, vcc
    v_lshlrev_b32 v12, 7, v12
    s_lshl_b32 s16, s7, 9
    s_add_u32 s16, s16, {WS_FBN + 8:#x}
    v_add_u32 v14, s16, v12
    v_lshrrev_b32 v12, 5, v12
    s_mov_b32 s50, {N*128:#x}
    s_mov_b32 s51, 0x20000
    s_mov_b32 s54, {N*128:#x}
    s_mov_b32 s55, 0x20000
    s_lshl_b32 s16, s20, 12
    s_add_u32 s16, s16, {WS_W:#x}
    s_add_u32 s56, s4, s16
    s_addc_u32 s57, s5, 0
    s_add_u32 s58, s56, 8192
    s_addc_u32 s59, s57, 0
    s_mul_i32 s16, s7, {4*20480}
    s_lshl_b32 s17, s21, 12
    s_add_u32 s16, s16, s17
    s_add_u32 s16, s16, {WS_OUT:#x}
    """)
    for s in range(4):
        a(f"s_add_u32 s{60+2*s}, s4, s16")
        a(f"s_addc_u32 s{61+2*s}, s5, 0")
        if s < 3: a(f"s_add_u32 s16, s16, 20480")
    a("s_waitcnt lgkmcnt(0)")
    for s in range(2): a(f"buffer_load_dwordx4 {vr(XR+4*s,4)}, v8, s[48:51], 0 offen offset:{32*s}")
    a.label("KF_WW")
    a(f"""
    global_load_dword v11, v12, s[80:81] offset:16{SC}
    s_waitcnt vmcnt(0)
    v_cmp_eq_u32 vcc, 0, v11
    s_cbranch_vccz KF_WG
    s_sub_u32 s82, s82, 1
    s_cbranch_scc1 KF_WG
    s_sleep 12
    s_branch KF_WW
    """)
    a.label("KF_WG")
    for s in range(4): a(f"global_load_dwordx4 {vr(WM_+4*s,4)}, v1, s[56:57] offset:{1024*s}{SC}")
    for s in range(4): a(f"global_load_dwordx4 {vr(WV_+4*s,4)}, v1, s[58:59] offset:{1024*s}{SC}")
    a("s_mov_b32 s16, 0xffff0000")
    for k in range(8):
        a(f"v_lshlrev_b32 v{Y0+2*k}, 16, v{XR+k}")
        a(f"v_and_b32 v{Y0+2*k+1}, s16, v{XR+k}")
    a.label("KF_GW")
    a(f"""
    ds_read_b32 v11, v3 offset:16
    s_waitcnt lgkmcnt(0)
    v_cmp_eq_u32 vcc, 0, v11
    s_cbranch_vccz KF_GG
    s_sleep 4
    s_branch KF_GW
    """)
    a.label("KF_GG")
    for s in range(4): a(f"ds_read_b128 {vr(AG+4*s,4)}, v9 offset:{32*s}")
    a("s_waitcnt vmcnt(0) lgkmcnt(0)")
    for s in range(4): a(mfma(Y0, WM_+4*s, AG+4*s))
    a(f"""
    s_cmp_eq_u32 s42, 0
    s_cselect_b32 s82, 0, {TMO2}
    s_setprio 0
    s_barrier
    """)
    stamp(a, 8)
    a.label("KF_OW")
    a(f"""
    global_load_dword v11, v14, s[4:5]{SC}
    s_sleep {FSL0}
    s_waitcnt vmcnt(0)
    v_cmp_eq_u32 vcc, 0, v11
    s_cbranch_vccz KF_OG
    s_sub_u32 s82, s82, 1
    s_cbranch_scc0 KF_OW
    s_mov_b32 s82, 0
    """)
    a.label("KF_OG")
    def ploads(k):
        for s in range(k, 4):
            for u in range(4):
                a(f"global_load_dwordx4 {vr(PD+16*s+4*u,4)}, v6, s[{60+2*s}:{61+2*s}] offset:{1024*u}{SC}")
    ploads(0)
    for s in range(4):
        B = PD + 16*s
        a.label(f"KF_C{s}")
        a(f"""
        s_waitcnt vmcnt({4*(3-s)})
        v_max3_u32 v12, v{B}, v{B+1}, v{B+2}
        v_max3_u32 v13, v{B+3}, v{B+4}, v{B+5}
        v_max3_u32 v14, v{B+6}, v{B+7}, v{B+8}
        v_max3_u32 v15, v{B+9}, v{B+10}, v{B+11}
        v_max3_u32 v12, v12, v{B+12}, v{B+13}
        v_max3_u32 v13, v13, v{B+14}, v{B+15}
        v_max3_u32 v12, v12, v14, v15
        v_max_u32 v12, v12, v13
        v_cmp_eq_u32 vcc, -1, v12
        s_cbranch_vccnz KF_R{s}
        """)
        a.label(f"KF_V{s}")
        for u in range(4): a(mfma(ACC, WV_+4*u, B+4*u, 0 if (s == 0 and u == 0) else None))
    a(f"""
    v_and_b32 v12, s16, v{PD+15}
    v_and_b32 v13, s16, v{PD+31}
    v_and_b32 v14, s16, v{PD+47}
    v_and_b32 v15, s16, v{PD+63}
    v_add_f32 v12, v12, v13
    v_add_f32 v14, v14, v15
    v_add_f32 v13, v12, v14
    v_add_f32 v12, v12, v14
    s_mov_b32 s17, {0 if FORCEFB else 0x5D800000 - 0x21800000:#x}
    s_nop 0
    v_permlane32_swap_b32 v12, v13
    v_subrev_u32 v14, 0x21800000, v13
    v_cmp_le_u32 vcc, s17, v14
    s_cbranch_vccnz KF_FB
    """)
    a.label("KF_FT")
    a(f"""
    v_rcp_f32 v12, v13
    s_nop 2
    """)
    for k in range(8): a(f"v_pk_fma_f32 {vr(ACC+2*k,2)}, {vr(ACC+2*k,2)}, v[12:13], {vr(Y0+2*k,2)} op_sel_hi:[1,0,1]")
    for k in range(8):
        a(f"v_cvt_pk_bf16_f32 v{XR+k}, v{ACC+2*k}, v{ACC+2*k+1}")
        if k == 3: a(f"buffer_store_dwordx4 {vr(XR,4)}, v10, s[52:55], 0 offen")
    a(f"buffer_store_dwordx4 {vr(XR+4,4)}, v10, s[52:55], 0 offen offset:32")
    ts_end(a, True)
    a("s_endpgm")
    for s in range(4):
        a.label(f"KF_R{s}")
        a(f"""
        s_waitcnt vmcnt(0)
        s_sub_u32 s82, s82, 1
        s_cbranch_scc0 KF_S{s}
        s_mov_b32 s82, 0
        s_branch KF_V{s}
        """)
        a.label(f"KF_S{s}")
        a(f"s_sleep {FSL}")
        ploads(s)
        a(f"s_branch KF_C{s}")
    Q, KF_, VF_, S_, O_, TL = 104, 120, 136, 64, 32, 152
    O = [32, 88]
    a.label("KF_FB")
    kvaddr(a, 4, 7, 0, 12, 13, 14)
    a(f"""
    s_lshl_b32 s17, s9, 12
    s_add_u32 s17, s17, {L_FB}
    v_add_u32 v4, s17, v4
    v_xor_b32 v5, 128, v4
    v_add_u32 v8, s17, v7
    v_xor_b32 v9, 128, v8
    v_add_u32 v7, s17, v1
    s_lshl_b32 s18, s19, 12
    v_add_u32 v6, s18, v6
    s_lshl_b32 s18, s19, 2
    s_add_u32 s18, s18, {L_FLG + 304}
    v_mov_b32 v12, s18
    """)
    a.label("KF_FQ")
    a(f"""
    s_sleep 2
    ds_read_b32 v13, v12
    s_waitcnt lgkmcnt(0)
    v_cmp_eq_u32 vcc, 0, v13
    s_cbranch_vccnz KF_FQ
    """)
    for s in range(4): a(f"ds_read_b128 {vr(Q+4*s,4)}, v6 offset:{L_QS+1024*s}")
    for b in range(2):
        for k in range(8): a(f"v_mov_b64 {vr(O[b]+2*k,2)}, 0")
    a(f"""
    v_mov_b32 v11, 0xff7fffff
    s_mov_b32 s17, 0
    """)
    a.label("KF_FL")
    for q in range(4): a(f"buffer_load_dwordx4 {vr(TL+4*q,4)}, v1, s[32:35], s17 offen offset:{1024*q}{SC}")
    a("s_waitcnt vmcnt(0)")
    for q in range(4): a(f"ds_write_b128 v7, {vr(TL+4*q,4)} offset:{1024*q}")
    for s in range(4): a(f"ds_read_b128 {vr(KF_+4*s,4)}, v{4+(s&1)} offset:{1024*s}")
    for ks in range(2):
        for b in range(2):
            for j in range(2):
                a(f"ds_read_b64_tr_b16 {vr(VF_+4*(2*ks+b)+2*j,2)}, v{8+j} offset:{b*2048+ks*256}")
    a("s_waitcnt lgkmcnt(0)")
    for s in range(4): a(mfma(S_, KF_+4*s, Q+4*s, 0 if s == 0 else None))
    a(f"""
    s_nop 15
    s_cmp_lg_u32 s17, {312*4096:#x}
    s_cbranch_scc1 KF_FM
    """)
    for r in range(8, 16): a(f"v_mov_b32 v{S_+r}, 0xff7fffff")
    a.label("KF_FM")
    a(f"v_max3_f32 v12, v11, v{S_}, v{S_+1}")
    for r in range(2, 16, 2): a(f"v_max3_f32 v12, v12, v{S_+r}, v{S_+r+1}")
    a(f"""
    v_mov_b32 v13, v12
    s_nop 1
    v_permlane32_swap_b32 v12, v13
    v_max_f32 v13, v12, v13
    v_sub_f32 v14, v11, v13
    v_exp_f32 v14, v14
    v_mov_b32 v11, v13
    """)
    for r in range(16): a(f"v_sub_f32 v{S_+r}, v{S_+r}, v13")
    for b in range(2):
        for k in range(8): a(f"v_pk_mul_f32 {vr(O[b]+2*k,2)}, {vr(O[b]+2*k,2)}, v[14:15] op_sel_hi:[1,0]")
    for r in range(16): a(f"v_exp_f32 v{S_+r}, v{S_+r}")
    a("s_nop 0")
    for p in range(8): a(f"v_cvt_pk_bf16_f32 v{S_+(p&3)+8*(p>>2)}, v{S_+2*p}, v{S_+2*p+1}")
    a("s_nop 1")
    for ks in range(2):
        for b in range(2): a(mfma(O[b], VF_+4*(2*ks+b), S_+8*ks))
    a(f"""
    s_add_u32 s17, s17, 4096
    s_cmp_le_u32 s17, {312*4096:#x}
    s_cbranch_scc1 KF_FL
    s_nop 15
    v_mov_b32 v12, v{O[1]+15}
    v_mov_b32 v13, v{O[1]+15}
    """)
    for b in range(2):
        for k in range(8): a(f"v_cvt_pk_bf16_f32 v{Q+8*b+k}, v{O[b]+2*k}, v{O[b]+2*k+1}")
    a("v_permlane32_swap_b32 v12, v13")
    a("s_nop 1")
    for u in range(4): a(mfma(ACC, WV_+4*u, Q+4*u, 0 if u == 0 else None))
    a("s_nop 15")
    a("s_branch KF_FT")

    a.label("KF_SLOW")
    a(f"""
    s_mul_i32 s21, s9, 10
    s_mul_i32 s22, s9, 2560
    v_lshlrev_b32 v6, 2, v0
    v_add_u32 v6, {L_LIST}, v6
    v_add_u32 v7, s22, v6
    v_mov_b32 v8, 0
    v_lshlrev_b32 v9, 1, v0              ; lane*2
    v_add_u32 v10, s24, v9
    buffer_load_ushort v41, v10, s[68:71], 0 offen
    """)
    for k in range(10): a(f"ds_write_b32 v7, v8 offset:{256*k}")
    srd(a, 44, 4, 5, WS_H16, N*128)
    a(f"s_mov_b32 s25, 0")
    a.label("KF_SP")
    a(f"""
    s_mul_i32 s28, s25, {ESTR}
    s_add_u32 s26, s28, s17
    v_mov_b32 v10, s26
    buffer_load_dword v10, v10, s[40:43], 0 offen{SC}
    s_waitcnt vmcnt(0)
    v_readfirstlane_b32 s27, v10
    s_and_b32 s29, s27, 0xffff
    s_add_u32 s28, s28, s29
    s_lshr_b32 s29, s27, 16
    s_add_u32 s29, s29, s28              ; end
    """)
    a.label("KF_SE")
    a(f"""
    s_cmp_ge_u32 s28, s29
    s_cbranch_scc1 KF_SPN
    v_mov_b32 v10, s28
    buffer_load_dword v10, v10, s[40:43], 0 offen{SC}
    s_add_u32 s28, s28, 4
    s_waitcnt vmcnt(0)
    v_readfirstlane_b32 s27, v10
    s_lshr_b32 s30, s27, 18
    s_sub_u32 s31, s30, s21
    s_cmp_ge_u32 s31, 10
    s_cbranch_scc1 KF_SE
    s_and_b32 s27, s27, 0xffff
    s_lshl_b32 s27, s27, 7
    v_add_u32 v12, s27, v9
    buffer_load_ushort v10, v12, s[44:47], 0 offen{SC}
    s_lshl_b32 s30, s30, 8
    v_add_u32 v11, s30, v6
    ds_read_b32 v14, v11
    s_waitcnt vmcnt(0) lgkmcnt(0)
    v_cvt_f32_f16 v10, v10
    v_add_f32 v10, v10, v14
    ds_write_b32 v11, v10
    s_branch KF_SE
    """)
    a.label("KF_SPN")
    a(f"""
    s_add_u32 s25, s25, 1
    s_cmp_lt_u32 s25, 250
    s_cbranch_scc1 KF_SP
    s_waitcnt lgkmcnt(0)
    s_lshr_b32 s22, s22, 1
    s_add_u32 s22, s22, {L_AGG}
    v_add_u32 v8, s22, v9
    """)
    for k in range(10): a(f"ds_read_b32 v{16+k}, v7 offset:{256*k}")
    a("s_waitcnt lgkmcnt(0)")
    for k in range(10):
        a(f"v_readlane_b32 s16, v41, s21")
        a(f"s_add_u32 s21, s21, 1")
        a(f"s_lshl_b32 s16, s16, 16")
        a(f"s_nop 1")
        a(f"v_mul_f32 v{16+k}, s16, v{16+k}")
        a(f"v_cvt_pk_bf16_f32 v{16+k}, v{16+k}, v{16+k}")
        a(f"ds_write_b16 v8, v{16+k} offset:{128*k}")
    a("s_branch KF_FS")

    AF, A63, BF, D, US = 44, 76, 92, 108, 16
    a.label("KF_AUX")
    a(f"""
    s_cmp_ge_u32 s6, 8
    s_cbranch_scc1 KF_END
    s_lshl_b32 s11, s6, 13
    s_add_u32 s11, s11, {WS_FBN:#x}
    v_lshl_add_u32 v1, v9, 7, s11
    v_mov_b64 v[2:3], 0
    v_mov_b64 v[4:5], 0
    s_lshl_b32 s10, s6, 2
    v_mov_b32 v6, s10
    v_mov_b32 v13, 1
    s_sub_u32 s9, s6, 4
    s_waitcnt lgkmcnt(0)
    s_mov_b32 s4, s58
    s_mov_b32 s5, s59
    s_cbranch_scc0 KF_WT
    global_store_dwordx4 v1, v[2:5], s[4:5]{SC}
    global_load_dword v20, v2, s[56:57] offset:128{SC}
    s_mov_b64 exec, 1
    s_waitcnt vmcnt(1)
    global_store_dword v6, v13, s[56:57]{SC}
    s_endpgm
    """)
    a.label("KF_WT")
    a(f"""
    v_mov_b32 v0, v9
    v_lshlrev_b32 v1, 4, v9
    v_and_b32 v7, 31, v0                 ; n
    v_lshrrev_b32 v8, 5, v0              ; h
    """)
    pi_calc(a, 9, 7, 10)
    a(f"""
    v_lshlrev_b32 v10, 4, v8             ; h*16
    v_add_u32 v11, {63*128}, v10
    s_cmp_ge_u32 s9, 2
    s_cselect_b32 s60, s50, s44
    s_cselect_b32 s61, s51, s45
    s_cselect_b32 s62, -1, 0
    s_cselect_b64 vcc, -1, 0
    s_and_b32 s63, s9, 1                 ; b
    v_cndmask_b32 v7, v9, v7, vcc
    v_lshl_add_u32 v7, v7, 7, v10
    v_add_u32 v15, 4096, v7
    s_lshl_b32 s63, s63, 6
    v_lshlrev_b32 v8, 10, v8
    v_lshl_add_u32 v8, v9, 1, v8
    v_add_u32 v8, s63, v8
    v_add_u32 v9, 4096, v8
    """)
    for s in range(4):
        for j in range(8):
            a(f"global_load_ushort v{D+8*s+j}, v{8+s//2}, s[52:53] offset:{(s&1)*2048 + j*128}")
    for A_ in range(2):
        for s in range(4):
            a(f"global_load_dwordx4 {vr(AF+16*A_+4*s,4)}, v{7+8*A_}, s[60:61] offset:{32*s}")
    for s in range(4):
        a(f"global_load_dwordx4 {vr(A63+4*s,4)}, v11, s[60:61] offset:{32*s}")
    a(f"""
    s_lshl_b32 s63, s9, 12
    s_add_u32 s63, s63, {WS_W:#x}
    s_add_u32 s64, s4, s63
    s_addc_u32 s65, s5, 0
    s_mov_b32 s63, 0x80008000
    s_waitcnt vmcnt(12)
    """)
    for k in range(16): a(f"v_lshl_or_b32 v{BF+k}, v{D+1+2*k}, 16, v{D+2*k}")
    a("s_waitcnt vmcnt(0)")
    for k in range(16):
        a(f"v_xor_b32 v{A63+k}, s63, v{A63+k}")
        a(f"v_and_b32 v{A63+k}, s62, v{A63+k}")
    a("s_nop 1")
    for s in range(4): a(mfma(D, A63+4*s, BF+4*s, 0 if s == 0 else None))
    a("s_nop 9")
    for s in range(4): a(mfma(D+16, AF+16+4*s, BF+4*s, str(D) if s == 0 else None))
    for s in range(4): a(mfma(D, AF+4*s, BF+4*s))
    a("s_nop 11")
    for k in range(16): a(f"v_cvt_pk_bf16_f32 v{AF+k}, v{D+2*k}, v{D+2*k+1}")
    for s in range(4): a(f"global_store_dwordx4 v1, {vr(AF+4*s,4)}, s[64:65] offset:{1024*s}{SC}")
    a(f"""
    s_mov_b64 exec, 1
    s_waitcnt vmcnt(0)
    global_store_dword v6, v13, s[56:57]{SC}
    s_endpgm
    """)
```

```python
import sys
from gen import *
from kf import *
plain = len(sys.argv) <= 1 or os.environ.get("PLAIN")
out = sys.argv[1] if len(sys.argv) > 1 else f"cdna_kernels/{NAME}.s"
a, v = kf()
label = NAME + "_kernel" if plain else "gps_all_kernel"
bad = assemble_file([(label, a, v, KF_GRID + 1, 768, KF_LDS)], out)
if plain:
    s = open(out).read().replace(f"; @launch kernel={label} ", "; @launch ")
    open(out, "w").write(s)
print("hazards:", bad)
import chk
chk.check_file(out)
```

```python
from gen import *
import os
KF_GRID = 252
KF_LDS = 163840
L_CNT = 131072
L_FLG = L_CNT + 1024
L_BIN = L_CNT + 2048
L_TAB = L_CNT + 3072
L_AGG = L_CNT + 2048
LSTR = 356
L_LIST = 163840 - 40*LSTR
L_INIT = 163840 - 12288 - 2048
L_QA = 98304
L_HI = L_QA + 8192
L_ES = L_CNT + 4096
L_QS = 49152
L_FB = 32768
CAP = 160
DV, SV = 132, 142
assert L_ES + 10240 <= L_INIT <= L_LIST
WS_OUT = 0x900000
WS_FBN = 0x700000
WS_QST = 0xE00000
TS = int(os.environ.get("TS", "0"))
WS_DBG = 0x2000000
HPRIO = int(os.environ.get("HPRIO", "2"))
SC = " sc1"
ESTR = 11264
BV = os.environ.get('BV', 'F')
BAL = int(os.environ.get('BAL', '1'))
LO = int(os.environ.get('LO', '1'))
AP = int(os.environ.get('AP', '30'))
H16E = int(os.environ.get('H16E', '1'))
MB = int(os.environ.get('MB', '16'))
DSW = int(os.environ.get('DSW', '3'))
SPF = int(os.environ.get('SPF', '2048'))
MPR = int(os.environ.get('MPR', '3'))
MP2 = int(os.environ.get('MP2', '2'))
B1T = int(os.environ.get('B1T', '2'))
B2T = int(os.environ.get('B2T', '1'))
CWX = int(os.environ.get('CWX', '4'))
EPR = int(os.environ.get('EPR', '0'))
TMO2 = 1 << 23
FORCEFB = int(os.environ.get('FORCEFB', '0'))
TMO = 1 << 20

TSP = int(os.environ.get("TSP", "0"))
TSC = int(os.environ.get("TSC", "0"))
def stamp(a, k, p=0):
    if not TS: return
    if (p and not TSP) or (TSP and not p and k in (4, 5, 6, 7, 8)): return
    a(f"""
    s_memrealtime s[90:91]
    s_waitcnt lgkmcnt(0)
    s_mov_b32 s{92+k}, s90
    """)
_dn = 0
def ts_end(a, helper=False):
    if not TS: return
    a("s_waitcnt vmcnt(0)")
    stamp(a, 9)
    a("s_mov_b64 exec, -1")
    if TS == 3:
        if not helper: return
        global _dn
        _dn += 1
        DX = int(os.environ.get("DX", "0"))
        a(f"""
        s_lshl_b32 s60, s2, 4
        s_or_b32 s60, s60, s6
        s_cmp_lg_u32 s60, {int(os.environ.get("DWG", "4"))*16 + 8}
        s_cbranch_scc1 DIAG_E{_dn}
        s_sub_u32 s60, s{92+DX if DX >= 0 else 88}, s88
        s_mul_i32 s60, s60, 10
        s_add_u32 s60, s60, 6000
        DIAG_L{_dn}:
        s_memrealtime s[90:91]
        s_waitcnt lgkmcnt(0)
        s_sub_u32 s61, s90, s88
        s_cmp_lt_u32 s61, s60
        s_cbranch_scc1 DIAG_L{_dn}
        DIAG_E{_dn}:
        """)
        return
    if TS == 2:
        m = [(0, 5), (1, 6), (3, 7), (5, 8), (6, 9), (7, 10)] if not helper else [(4, 11), (5, 12), (6, 13), (7, 14), (9, 15)]
        a("s_not_b32 s92, s92")
        a("v_mov_b32 v126, 0")
        a("s_mov_b64 exec, 1")
        for k, w in m:
            a(f"v_mov_b32 v127, s{92+k}")
            a(f"global_atomic_umax v126, v127, s[80:81] offset:{4*w} sc1")
        return
    for k in range(10): a(f"v_writelane_b32 v127, s{92+k}, {k}")
    a(f"""
    s_mul_i32 s60, s2, 12
    s_add_u32 s60, s60, s6
    s_lshl_b32 s60, s60, 8
    s_add_u32 s60, s60, {WS_DBG:#x}
    s_add_u32 s60, s4, s60
    s_addc_u32 s61, s5, 0
    v_mbcnt_lo_u32_b32 v126, -1, 0
    v_mbcnt_hi_u32_b32 v126, -1, v126
    v_lshlrev_b32 v126, 2, v126
    global_store_dword v126, v127, s[60:61]
    """)

KA, VA, KS, VS = 0, 2, 4, 2
FA, FS = 6, 7
KF, VF = 8, 24
S = [40, 56]
QO, QS = 72, 88
OO, OS = 104, 136

J = [0]
TL = [(0, 1, 2), (6, 7, 0), (7, 0, 1)]
def kread(s, unit, base=KA):
    u = unit % 10; half, i = divmod(u, 5)
    if i & 1: return None
    off = half*32768 + TL[J[0]][i >> 1]*4096 + s*1024
    return f"ds_read_b128 {vr(KF+4*s,4)}, v{base+(s&1)} offset:{off}"
def vread(b, ks, j, unit):
    u = unit % 10; half, i = divmod(u, 5)
    if i & 1: return None
    off = half*32768 + TL[J[0]][i >> 1]*4096 + b*2048 + ks*256
    f = VF + 4*(2*ks+b) + 2*j
    return f"ds_read_b64_tr_b16 {vr(f,2)}, v{VA+j} offset:{off}"
def qk(s, unit):
    q = QS if (unit % 5) & 1 else QO
    return mfma(S[unit & 1], KF+4*s, q+4*s, 0 if s == 0 else None)
def pv(b, ks, unit):
    o = OS if (unit % 5) & 1 else OO
    return mfma(o+16*b, VF+4*(2*ks+b), S[unit & 1]+8*ks)
def ex(unit, r):
    return f"v_exp_f32 v{S[unit&1]+r}, v{S[unit&1]+r}"
def cv(unit, p):
    s = S[unit & 1]
    return f"v_cvt_pk_bf16_f32 v{s+(p&3)+8*(p>>2)}, v{s+2*p}, v{s+2*p+1}"

def unit_code(u, extra, post_wait, pre_rd):
    out = []
    for g in range(8):
        w = ({1: 0, 3: 0, 4: 8} if g == 0 else {0: 3, 2: 4, 4: 0} if g == 4 else {}).get(u % 5)
        if w is not None: out.append(f"s_waitcnt lgkmcnt({w})")
        out += post_wait.get(g, [])
        if g < 4:
            out.append(qk(g, u+1))
            rd = [kread(g, u+2)]
        else:
            b, ks = (g-4) & 1, (g-4) >> 1
            out.append(pv(b, ks, u))
            rd = [vread(b, ks, 0, u+1), vread(b, ks, 1, u+1)]
        if u % 5 in (0, 2) and g == 2: rd = [None]
        if u % 5 in (0, 2) and g == 5: rd = [kread(2, u+2)]
        if g < 5:   eu, ep = u, g+3
        else:       eu, ep = u+1, g-5
        if g < 6:   cu, cp = u, g+2
        else:       cu, cp = u+1, g-6
        out.append(cv(cu, cp))
        out += pre_rd.get(g, [])
        out.append(rd[0])
        out.append(ex(eu, 2*ep))
        out += rd[1:]
        out.append(ex(eu, 2*ep+1))
        out += extra.get(g, [])
    return [x for x in out if x]

def kvaddr(a, dk, dv, lane, t0, t1, t2):
    a(f"""
    v_and_b32 v{t0}, 31, v{lane}         ; n
    v_lshrrev_b32 v{t1}, 5, v{lane}      ; h
    v_lshlrev_b32 v{dk}, 2, v{t1}
    v_xor_b32 v{dk}, v{dk}, v{t0}
    v_lshlrev_b32 v{dk}, 4, v{dk}
    v_lshl_add_u32 v{dk}, v{t1}, 9, v{dk}
    v_bfe_u32 v{t0}, v{lane}, 4, 1
    v_bfe_u32 v{dv}, v{lane}, 1, 1
    v_lshl_or_b32 v{t0}, v{t0}, 1, v{dv} ; c3
    v_bfe_u32 v{dv}, v{lane}, 2, 2
    v_lshl_or_b32 v{dv}, v{t1}, 2, v{dv} ; key0
    v_lshlrev_b32 v{t2}, 2, v{t0}
    v_xor_b32 v{dv}, v{dv}, v{t2}
    v_lshlrev_b32 v{dv}, 4, v{dv}
    v_lshl_add_u32 v{dv}, v{t0}, 9, v{dv}
    v_and_b32 v{t2}, 1, v{lane}
    v_lshl_add_u32 v{dv}, v{t2}, 3, v{dv}
    """)

def ln_chain(XR, F, T, HB, m63):
    o = []
    for k in range(4):
        o.append(f"v_lshlrev_b32 v{F+2*k}, 16, v{XR+k}")
        o.append(f"v_and_b32 v{F+2*k+1}, s3, v{XR+k}")
    o += [f"v_pk_add_f32 {vr(T,2)}, {vr(F,2)}, {vr(F+2,2)}",
          f"v_pk_add_f32 {vr(T+2,2)}, {vr(F+4,2)}, {vr(F+6,2)}",
          f"v_pk_add_f32 {vr(T,2)}, {vr(T,2)}, {vr(T+2,2)}",
          f"v_add_f32 v{T}, v{T}, v{T+1}"]
    def dsum(r):
        for m in ("quad_perm:[1,0,3,2]", "quad_perm:[2,3,0,1]", "row_half_mirror"):
            o.append(None)
            o.append(f"v_add_f32_dpp v{r}, v{r}, v{r} {m} row_mask:0xf bank_mask:0xf")
    dsum(T)
    o.append(f"v_mul_f32 v{T}, 0xbc800000, v{T}")
    for k in range(4):
        o.append(f"v_pk_add_f32 {vr(F+2*k,2)}, {vr(F+2*k,2)}, {vr(T,2)} op_sel_hi:[1,0]")
    o += [f"v_pk_mul_f32 {vr(T+2,2)}, {vr(F,2)}, {vr(F,2)}",
          f"v_pk_mul_f32 {vr(T+4,2)}, {vr(F+2,2)}, {vr(F+2,2)}",
          f"v_pk_fma_f32 {vr(T+2,2)}, {vr(F+4,2)}, {vr(F+4,2)}, {vr(T+2,2)}",
          f"v_pk_fma_f32 {vr(T+4,2)}, {vr(F+6,2)}, {vr(F+6,2)}, {vr(T+4,2)}",
          f"v_pk_add_f32 {vr(T+2,2)}, {vr(T+2,2)}, {vr(T+4,2)}",
          f"v_add_f32 v{T}, v{T+2}, v{T+3}"]
    dsum(T)
    o += [f"v_mov_b32 v{T+2}, 0x3727c5ac",
          f"v_fmac_f32 v{T+2}, 0x3c800000, v{T}",
          f"v_rsq_f32 v{T}, v{T+2}"]
    for k in range(4):
        o.append(f"v_pk_mul_f32 {vr(F+2*k,2)}, {vr(F+2*k,2)}, {vr(T,2)} op_sel_hi:[1,0]")
    o.append(f"v_cndmask_b32 v{T+2}, v{F+7}, 1.0, {m63}")
    for k in range(3):
        o.append(f"v_cvt_pk_bf16_f32 v{HB+k}, v{F+2*k}, v{F+2*k+1}")
    o.append(f"v_cvt_pk_bf16_f32 v{HB+3}, v{F+6}, v{T+2}")
    return o

def ln16_chain(X0, X1, F, T, m63):
    o = []
    for k in range(8):
        x = (X0 + k) if k < 4 else (X1 + k - 4)
        o.append(f"v_lshlrev_b32 v{F+2*k}, 16, v{x}")
        o.append(f"v_and_b32 v{F+2*k+1}, s3, v{x}")
    P = lambda r: vr(r, 2)
    o += [f"v_pk_add_f32 {P(T)}, {P(F)}, {P(F+2)}", f"v_pk_add_f32 {P(T+2)}, {P(F+4)}, {P(F+6)}",
          f"v_pk_add_f32 {P(T+4)}, {P(F+8)}, {P(F+10)}", f"v_pk_add_f32 {P(T)}, {P(T)}, {P(F+12)}",
          f"v_pk_add_f32 {P(T+2)}, {P(T+2)}, {P(F+14)}", f"v_pk_add_f32 {P(T)}, {P(T)}, {P(T+4)}",
          f"v_pk_add_f32 {P(T)}, {P(T)}, {P(T+2)}", f"v_add_f32 v{T}, v{T}, v{T+1}"]
    def dsum(r):
        for m in ("quad_perm:[1,0,3,2]", "quad_perm:[2,3,0,1]"):
            o.append(None)
            o.append(f"v_add_f32_dpp v{r}, v{r}, v{r} {m} row_mask:0xf bank_mask:0xf")
    dsum(T)
    o.append(f"v_mul_f32 v{T}, 0xbc800000, v{T}")
    for k in range(8): o.append(f"v_pk_add_f32 {P(F+2*k)}, {P(F+2*k)}, {P(T)} op_sel_hi:[1,0]")
    o += [f"v_pk_mul_f32 {P(T+2)}, {P(F)}, {P(F)}", f"v_pk_mul_f32 {P(T+4)}, {P(F+2)}, {P(F+2)}"]
    for k in range(2, 8):
        t = T + 2 + 2*(k & 1)
        o.append(f"v_pk_fma_f32 {P(t)}, {P(F+2*k)}, {P(F+2*k)}, {P(t)}")
    o += [f"v_pk_add_f32 {P(T+2)}, {P(T+2)}, {P(T+4)}", f"v_add_f32 v{T}, v{T+2}, v{T+3}"]
    dsum(T)
    o += [f"v_mov_b32 v{T+2}, 0x3727c5ac", f"v_fmac_f32 v{T+2}, 0x3c800000, v{T}", f"v_rsq_f32 v{T}, v{T+2}"]
    for k in range(8): o.append(f"v_pk_mul_f32 {P(F+2*k)}, {P(F+2*k)}, {P(T)} op_sel_hi:[1,0]")
    o.append(f"v_cndmask_b32 v{F+15}, v{F+15}, 1.0, {m63}")
    for k in range(8): o.append(f"v_cvt_pk_bf16_f32 v{F+k}, v{F+2*k}, v{F+2*k+1}")
    return o

def arrive(a, cnt, vinc, last, vflag, off, t, lab):
    a(f"""
    v_mov_b32 v{t}, {cnt}
    s_mov_b64 exec, 1
    s_waitcnt vmcnt(0)
    ds_add_rtn_u32 v{t+1}, v{t}, v{vinc}
    s_waitcnt lgkmcnt(0)
    v_cmp_eq_u32 vcc, {last}, v{t+1}
    s_cbranch_vccz {lab}
    global_store_dword v{vflag}, v{vinc}, s[4:5] offset:{off}{SC}
    """)
    a.label(lab)
    a("s_mov_b64 exec, -1")

def edge_ld(a):
    for R_, P_ in ((DV, 40), (SV, 38)):
        a(f"""
        global_load_dwordx4 {vr(R_,4)}, v152, s[{P_}:{P_+1}]
        global_load_dwordx4 {vr(R_+4,4)}, v152, s[{P_}:{P_+1}] offset:1024
        global_load_dwordx2 {vr(R_+8,2)}, v153, s[{P_}:{P_+1}] offset:2048
        """)

def pollset(a):
    a(f"""
    s_lshl_b32 s16, s8, 13
    s_add_u32 s16, s16, {WS_FBN:#x}
    v_lshl_add_u32 v2, v9, 7, s16
    s_lshl_b32 s16, s6, 6
    s_sub_u32 s16, {39 + 512 - 256}, s16
    v_mov_b32 v3, s16
    v_mad_u32_u24 v3, v9, 40, v3
    v_and_b32 v5, 255, v3
    s_movk_i32 s16, 103
    v_cmp_gt_u32 s[86:87], s16, v5
    v_cmp_le_i32 vcc, 0, v3
    s_movk_i32 s16, 768
    s_and_b64 s[86:87], s[86:87], vcc
    v_cmp_gt_i32 vcc, s16, v3
    s_movk_i32 s16, 256
    s_and_b64 s[76:77], s[86:87], vcc
    v_cmp_gt_i32 vcc, s16, v3
    s_and_b32 s79, s87, 0x0fffffff
    s_or_b32 s79, s79, 0x08000000
    s_cmp_eq_u32 s8, 3
    s_cselect_b32 s87, s79, s87
    s_and_b32 s78, s86, vcc_lo
    s_mov_b32 s79, 0
    """)

def kf():
    a = Asm()
    XP, SRCP, DSTP, DEGP, WMP, WQP, WKP, WVP, WOP, OUTP, DBGP, WSP = [36+2*i for i in range(12)]
    P2 = lambda r: f"s[{r}:{r+1}]"
    if TS == 3: a("s_memrealtime s[88:89]")
    a(f"""
    s_load_dwordx16 s[36:51], s[0:1], 0
    s_load_dwordx8 s[52:59], s[0:1], 64
    v_lshrrev_b32 v1, 6, v0
    v_and_b32 v9, 63, v0                 ; lane
    s_sub_u32 s2, s2, 1
    v_readfirstlane_b32 s6, v1           ; wave
    s_cbranch_scc1 KF_AUX
    s_cmp_ge_u32 s2, {KF_GRID}
    s_cbranch_scc1 KF_END
    v_lshlrev_b32 v11, 4, v0             ; tid*16
    v_lshlrev_b32 v10, 4, v9             ; lane*16
    v_mov_b64 v[124:125], -1
    v_mov_b64 v[126:127], -1
    v_add_u32 v128, {L_INIT}, v11
    v_mul_u32_u24 v129, {LSTR}, v0
    v_add_u32 v129, {L_LIST}, v129
    v_cmp_gt_u32 vcc, 256, v0
    v_lshlrev_b32 v130, 2, v0
    v_add_u32 v130, {L_CNT}, v130
    v_cndmask_b32 v129, 0, v129, vcc
    ds_write_b128 v128, v[124:127]
    ds_write_b128 v128, v[124:127] offset:2048
    ds_write_b32 v130, v129
    s_lshr_b32 s7, s2, 2                 ; qb
    s_and_b32 s8, s2, 3                  ; split
    s_mul_i32 s19, s7, 20480
    s_mul_i32 s12, s8, 5
    s_lshl_b32 s16, s6, 1
    s_sub_u32 s17, s16, 5
    s_sub_u32 s16, s16, 4                ; kB
    s_cmp_lt_u32 s6, 5
    s_cselect_b32 s16, s6, s16
    s_add_u32 s13, s17, 5
    s_cmp_lt_u32 s17, s12
    s_cselect_b32 s17, s17, s13
    s_add_u32 s13, s16, 5
    s_cmp_lt_u32 s16, s12
    s_cselect_b32 s16, s16, s13          ; piece B
    s_add_u32 s13, s12, s6
    s_cmp_lt_u32 s6, 5
    s_cselect_b32 s17, s13, s17          ; piece A
    s_lshl_b32 s12, s17, 10
    s_add_u32 s12, s12, s19
    s_lshl_b32 s13, s16, 10
    s_add_u32 s13, s13, s19
    v_add_u32 v58, s12, v10              ; x offsets
    v_add_u32 v59, s13, v10
    s_mul_i32 s24, s2, 10240
    s_cmp_ge_u32 s2, 250
    s_cselect_b32 s24, 0, s24
    s_and_b32 s22, s6, 3
    s_mul_i32 s22, s22, 2560
    s_add_u32 s22, s22, s24
    v_add_u32 v152, s22, v10
    v_lshlrev_b32 v153, 3, v9
    v_add_u32 v153, s22, v153
    s_mov_b32 s62, {N*128:#x}
    s_mov_b32 s63, 0x20000
    v_lshrrev_b32 v22, 2, v9
    v_and_b32 v23, 3, v9
    s_mul_i32 s11, s8, 80
    s_add_u32 s11, s11, s6
    s_lshl_b32 s11, s11, 12
    v_lshlrev_b32 v22, 7, v22
    v_lshl_add_u32 v22, v23, 4, v22
    v_add_u32 v22, s11, v22
    s_cmp_ge_u32 s6, 10
    s_cbranch_scc1 KF_MLD
    s_waitcnt lgkmcnt(0)
    s_mov_b32 s60, s{XP}
    s_mov_b32 s61, s{XP+1}
    """)
    if DSW == -1:
        a("s_cmp_ge_u32 s6, 8")
        a("s_cbranch_scc0 KF_NF")
        a("s_setprio 3")
        edge_ld(a)
        a("s_setprio 0")
        a.label("KF_NF")
    a(f"""
    buffer_load_dwordx4 v[12:15], v58, s[60:63], 0 offen
    buffer_load_dwordx4 v[16:19], v59, s[60:63], 0 offen
    """)
    EXL = f"""
    global_load_dwordx4 v[88:91], v22, {P2(XP)} offset:0
    global_load_dwordx4 v[92:95], v22, {P2(XP)} offset:64
    global_load_dwordx4 v[96:99], v22, {P2(XP)} offset:2048
    global_load_dwordx4 v[64:67], v22, {P2(XP)} offset:2112
    """
    def edge_addr(): pass
    def spf():
        if not SPF: return
        a(f"""
        s_cmp_eq_u32 s6, 8
        s_cselect_b32 s22, s{DSTP}, s{SRCP}
        s_cselect_b32 s23, s{DSTP+1}, s{SRCP+1}
        s_add_u32 s22, s22, s24
        s_addc_u32 s23, s23, 0
        """)
        for k in range(0, 10240, SPF): a(f"s_load_dword s83, s[22:23], {k}")
    def edge_loads():
        for R_, P_ in ((DV, DSTP), (SV, SRCP)):
            a(f"""
            global_load_dwordx4 {vr(R_,4)}, v152, {P2(P_)}
            global_load_dwordx4 {vr(R_+4,4)}, v152, {P2(P_)} offset:1024
            global_load_dwordx2 {vr(R_+8,2)}, v153, {P2(P_)} offset:2048
            """)
    a("s_cmp_ge_u32 s6, 8")
    if LO < 1:
        a("s_cbranch_scc1 KF_INIT")
        a(EXL)
    a.label("KF_INIT")
    stamp(a, 0)
    a(f"""
    s_barrier
    s_mov_b32 s4, s{WSP}
    s_mov_b32 s5, s{WSP+1}
    s_mov_b32 s80, s{DBGP}
    s_mov_b32 s81, s{DBGP+1}
    """)
    if LO >= 1:
        a("s_cbranch_scc1 KF_NX")
        a(EXL)
        a.label("KF_NX")
    XA, XB, FA_, FB_, TA, TB, HBA, HBB, HX = 12, 16, 20, 28, 36, 42, 48, 12, 52
    a(f"""
    s_mov_b32 s3, 0xffff0000
    v_lshrrev_b32 v1, 3, v9
    v_and_b32 v2, 7, v9                  ; chunk
    v_and_b32 v3, 3, v9
    v_lshlrev_b32 v3, 2, v3
    v_xor_b32 v3, v3, v1
    v_lshlrev_b32 v3, 4, v3
    v_lshl_add_u32 v3, v2, 9, v3
    s_and_b32 s22, s17, 3
    s_lshl_b32 s22, s22, 7
    s_lshr_b32 s23, s17, 2
    s_lshl_b32 s23, s23, 12
    s_or_b32 s22, s22, s23
    v_xor_b32 v56, s22, v3
    s_and_b32 s22, s16, 3
    s_lshl_b32 s22, s22, 7
    s_lshr_b32 s23, s16, 2
    s_lshl_b32 s23, s23, 12
    s_or_b32 s22, s22, s23
    v_xor_b32 v63, s22, v3
    v_add_u32 v62, {L_HI}, v56
    v_add_u32 v63, {L_HI}, v63
    s_cmp_lt_u32 s12, s62
    s_cselect_b32 s68, 0x80808080, 0
    s_mov_b32 s69, s68
    s_cmp_lt_u32 s13, s62
    s_cselect_b32 s70, 0x80808080, 0
    s_mov_b32 s71, s70
    s_add_u32 s72, s4, s19
    s_addc_u32 s73, s5, 0
    s_cmp_ge_u32 s6, 8
    s_cbranch_scc1 KF_L8
    s_lshl_b32 s16, s2, 7
    s_add_u32 s16, s16, {WS_FBN:#x}
    v_mov_b32 v60, s16
    """)
    srd(a, 64, 4, 5, WS_H16, N*128)
    a(f"""
    s_and_b32 s9, s6, 3                  ; j
    s_lshr_b32 s14, s6, 2                ; parity
    v_and_b32 v1, 31, v9                 ; n
    s_mul_i32 s18, s9, 40
    v_add_u32 v2, s18, v1                ; 40j + n
    v_lshrrev_b32 v3, 3, v1
    v_lshl_add_u32 v3, v3, 5, v1         ; 32(n>>3) + n = 40(n>>3) + (n&7)
    v_add_u32 v3, 32, v3
    s_add_u32 s18, s9, 1
    s_and_b32 s18, s18, 3
    s_mul_i32 s18, s18, 40
    v_add_u32 v4, s18, v1
    s_cmp_eq_u32 s14, 0
    s_cselect_b64 vcc, -1, 0
    v_cndmask_b32 v3, v3, v4, vcc
    v_lshrrev_b32 v1, 5, v9              ; h
    """)
    for src_, d_, d2 in ((2, 69, 70), (3, 57, 61)):
        a(f"""
        v_lshlrev_b32 v4, 2, v1
        v_xor_b32 v4, v4, v{src_}
        v_and_b32 v5, 31, v4
        v_lshrrev_b32 v4, 5, v4
        v_lshlrev_b32 v4, 12, v4
        v_lshl_add_u32 v4, v5, 4, v4
        v_lshl_add_u32 v4, v1, 9, v4
        v_add_u32 v{d_}, {L_HI}, v4
        v_xor_b32 v{d2}, 128, v{d_}
        """)
    a(f"""
    v_add_u32 v68, {L_QA}, v10           ; M frags
    v_mov_b32 v8, 4
    """)
    kvaddr(a, 20, 21, 9, 1, 2, 3)
    a(f"""
    s_lshl_b32 s18, s14, 12              ; par*4096
    s_xor_b32 s19, s14, 1
    s_mul_i32 s19, s19, 5
    s_lshl1_add_u32 s19, s9, s19
    s_and_b32 s19, s19, 7
    s_lshl_b32 s19, s19, 12
    s_cmp_ge_u32 s19, {6*4096}
    s_cselect_b32 s21, 0, s19
    v_add_u32 v{KA}, s21, v20
    v_add_u32 v{VA}, s21, v21
    v_xor_b32 v{KA+1}, 128, v{KA}
    v_xor_b32 v{VA+1}, 128, v{VA}
    v_add_u32 v{KS}, s19, v20
    v_xor_b32 v{KS+1}, 128, v{KS}
    s_lshl_b32 s17, s6, 5
    s_add_u32 s17, s17, {L_FLG}
    v_and_b32 v20, 3, v9
    v_lshl_add_u32 v{FA}, v20, 2, s17
    v_mov_b32 v{FS}, 1
    s_mov_b32 s20, 5
    v_lshrrev_b32 v71, 2, v9
    v_lshlrev_b32 v21, 2, v20
    v_xor_b32 v71, v71, v21
    v_lshlrev_b32 v71, 4, v71
    v_lshl_add_u32 v71, v20, 9, v71
    s_lshl_b32 s17, s6, 12
    v_add_u32 v71, s17, v71
    s_mov_b32 s74, 0x88888888
    s_mov_b32 s75, s74
    s_mul_i32 s25, s2, 20480
    s_add_u32 s25, s25, {WS_OUT:#x}
    s_lshl_b32 s26, s9, 12
    s_add_u32 s26, s26, s25
    s_add_u32 s28, s4, s26
    s_addc_u32 s29, s5, 0
    s_lshl_b32 s26, s9, 10
    s_add_u32 s25, s25, s26
    s_add_u32 s25, s25, 16384
    s_add_u32 s30, s4, s25
    s_addc_u32 s31, s5, 0
    """)
    for r in range(32): a(f"v_mov_b64 {vr(OO+2*r,2)}, 0")
    a(f"""
    s_cmp_lt_u32 s6, 5
    s_cbranch_scc0 KF_LW
    s_setprio 3
    """)
    a.label("KF_LW")
    a("s_waitcnt vmcnt(5)")
    stamp(a, 1)
    def emit(ch):
        for x in ch:
            a("s_nop 1" if x is None else x)
            if x and x.startswith("v_rsq"): a("s_nop 0")
    emit(ln_chain(XA, FA_, TA, HBA, "s[68:69]"))
    a(f"""
    s_cbranch_scc0 KF_NP
    global_store_dwordx4 v56, {vr(HBA,4)}, s[72:73]{SC}
    s_setprio 0
    """)
    for k in range(4): a(f"v_cvt_pk_f16_f32 v{HX+k}, v{FA_+2*k}, v{FA_+2*k+1}")
    a(f"""
    s_waitcnt vmcnt(5)
    s_branch KF_NP1
    """)
    a.label("KF_NP")
    a("s_waitcnt vmcnt(4)")
    a.label("KF_NP1")
    a(f"ds_write_b128 v62, {vr(HBA,4)}")
    emit(ln_chain(XB, FB_, TB, HBB, "s[70:71]"))
    stamp(a, 4, 1)
    a(f"""
    ds_write_b128 v63, {vr(HBB,4)}
    s_cmp_eq_u32 s2, 251
    s_cbranch_scc1 KF_PAD
    """)
    a.label("KF_SG")
    a(f"""
    s_cmp_lt_u32 s6, 5
    s_waitcnt vmcnt(1)
    s_cbranch_scc1 KF_X1
    s_waitcnt vmcnt(0)
    """)
    a.label("KF_X1")
    stamp(a, 6, 1)
    c0, c1 = ln16_chain(88, 92, 20, 12, "s[74:75]"), ln16_chain(96, 64, 36, 88, "s[74:75]")
    for i, (x, y) in enumerate(zip(c0, c1)):
        if i == AP:
            a(f"""
            s_cbranch_scc0 KF_X2
            v_mov_b32 v18, {L_FLG + 296}
            s_mov_b64 exec, 1
            s_waitcnt vmcnt(0)
            ds_add_rtn_u32 v19, v18, v8
            s_mov_b64 exec, -1
            buffer_store_dwordx4 {vr(HX,4)}, v58, s[64:67], 0 offen{SC}
            KF_X2:
            """)
        if i == AP + 1: stamp(a, 7, 1)
        if i == AP + 9:
            a(f"""
            s_cbranch_scc0 KF_X3
            s_waitcnt lgkmcnt(0)
            v_readfirstlane_b32 s16, v19
            s_mov_b64 exec, 1
            s_cmp_eq_u32 s16, 20
            s_cbranch_scc0 KF_X4
            global_store_dword v60, v8, s[4:5]{SC}
            KF_X4:
            s_mov_b64 exec, -1
            KF_X3:
            """)
        if x is None: a("s_nop 0")
        else: a(x); a(y)
        if i == len(c0) - 5:
            a(f"ds_write_b128 v71, v[20:23]")
            a(f"ds_write_b128 v71, v[36:39] offset:256")
    a(f"""
    ds_write_b128 v71, v[24:27] offset:2048
    ds_write_b128 v71, v[40:43] offset:2304
    """)
    stamp(a, 8, 1)
    a(f"""
    s_waitcnt lgkmcnt(0)
    s_barrier
    """)
    stamp(a, 2)
    if BAL == 1: a("s_setprio 2")
    MF = 8
    for s in range(4):
        a(f"ds_read_b128 {vr(MF+4*s,4)}, v68 offset:{1024*s}")
        a(f"ds_read_b128 {vr(QO+4*s,4)}, v{70 if s&1 else 69} offset:{1024*s}")
    for s in range(4): a(f"ds_read_b128 {vr(MF+16+4*s,4)}, v68 offset:{4096+1024*s}")
    for s in range(4):
        a(f"s_waitcnt lgkmcnt({10-s})")
        a(mfma(S[0], MF+4*s, QO+4*s, 0 if s == 0 else None))
        a(f"ds_read_b128 {vr(QS+4*s,4)}, v{61 if s&1 else 57} offset:{1024*s}")
    for s in range(4):
        a(f"s_waitcnt lgkmcnt({7-s})")
        a(mfma(S[1], MF+16+4*s, QO+4*s, 0 if s == 0 else None))
    a("s_nop 3")
    for k in range(8): a(f"v_cvt_pk_bf16_f32 v{QO+k}, v{S[0]+2*k}, v{S[0]+2*k+1}")
    a("s_waitcnt lgkmcnt(0)")
    for s in range(4):
        a(mfma(S[0], MF+4*s, QS+4*s, 0 if s == 0 else None))
        J[0] = 0
        a(kread(s, 0, KS))
        if s == 0: a("s_nop 0")
        for k in range(2*s, 2*s+2): a(f"v_cvt_pk_bf16_f32 v{QO+8+k}, v{S[1]+2*k}, v{S[1]+2*k+1}")
    for s in range(4): a(mfma(S[1], MF+16+4*s, QS+4*s, 0 if s == 0 else None))
    a(f"""
    v_mov_b32 v24, {L_FLG + 316}
    s_mov_b64 exec, 1
    s_waitcnt vmcnt(0)
    ds_add_u32 v24, v{FS}
    s_mov_b64 exec, -1
    s_nop 3
    """)
    for k in range(8): a(f"v_cvt_pk_bf16_f32 v{QS+k}, v{S[0]+2*k}, v{S[0]+2*k+1}")
    stamp(a, 5)
    stamp(a, 3)
    if TSC: a("s_memtime s[86:87]\ns_mov_b32 s96, 0\ns_mov_b32 s85, 0\ns_mov_b32 s84, 0")
    a(f"""
    v_mbcnt_lo_u32_b32 v4, -1, 0
    v_mbcnt_hi_u32_b32 v4, -1, v4
    v_and_b32 v5, 7, v4
    v_lshlrev_b32 v5, 5, v5
    v_add_u32 v5, {L_FLG + 16}, v5
    s_lshl_b32 s16, s9, 2
    s_add_u32 s16, s16, {L_FLG + 352}
    v_mov_b32 v26, s16
    v_cmp_gt_u32 vcc, 32, v4
    v_lshlrev_b32 v4, 4, v4
    s_lshl_b32 s16, s9, 13
    v_cndmask_b32 v5, v26, v5, vcc
    v_add_u32 v4, s16, v4                ; j*8192 + lane*16
    s_cmp_eq_u32 s6, 7
    s_cbranch_scc1 KF_V_1
    s_cmp_eq_u32 s6, 1
    s_cbranch_scc1 KF_V_2
    """)
    a0 = a
    for jj in range(3):
        J[0] = jj
        class W:
            def __call__(self, x): a0(x.replace("_@", f"_{jj}"))
            def label(self, x): a0.label(x.replace("_@", f"_{jj}"))
        a = W()
        a.label("KF_V_@")
        a(f"s_waitcnt lgkmcnt(0)")
        for s in range(4):
            a(qk(s, 0))
            for k in range(2*s, 2*s+2): a(f"v_cvt_pk_bf16_f32 v{QS+8+k}, v{S[1]+2*k}, v{S[1]+2*k+1}")
        for ks in range(2):
            for b in range(2):
                a(vread(b, ks, 0, 0)); a(vread(b, ks, 1, 0))
        a("s_nop 1")
        for r in range(6): a(ex(0, r))
        a(cv(0, 0)); a(cv(0, 1))
        a(".p2align 6")
        a.label("KF_LOOP_@")
        for u in range(10):
            extra, pw, prd = {}, {}, {}
            if u == 7:
                extra = {6: [f"v_xor_b32 v{KA}, 0x10000, v{KA}"], 7: [f"v_xor_b32 v{KA+1}, 0x10000, v{KA+1}"]}
            if u == 9:
                extra = {1: [f"v_xor_b32 v{VA}, 0x10000, v{VA}"], 2: [f"v_xor_b32 v{VA+1}, 0x10000, v{VA+1}"]}
            if u == 9:
                extra.update({5: ["s_sub_u32 s20, s20, 1"], 6: ["s_cmp_lg_u32 s20, 0"]})
            if u % 5 == 2:
                extra.setdefault(2, []).append(f"ds_read_b32 v{S[u&1]+4}, v{FA}")
            if u % 5 == 3:
                pw[0] = [f"v_cmp_ge_u32 vcc, v{FS}, v{S[(u-1)&1]+4}"]
                prd[0] = [f"s_cbranch_vccnz KF_SPIN{u}_@", f"KF_GO{u}_@:"]
                if TS == 1 and u == 3 and not TSP and not TSC:
                    prd[0] += ["s_cmp_eq_u32 s20, 5", "s_cbranch_scc0 KF_TS3_@", "s_memrealtime s[90:91]", "s_waitcnt lgkmcnt(0)", "s_mov_b32 s96, s90", "KF_TS3_@:"]
            if u % 5 == 4:
                prd[4] = [f"ds_write_b32 v{FA}, v{FS} offset:16"]
                extra.setdefault(7, []).append(f"v_add_u32 v{FS}, 1, v{FS}")
            if BAL == 1 and u == 0:
                extra.setdefault(1, []).extend([f"s_cmp_eq_u32 s20, {B1T}", "s_cbranch_scc0 KF_BL0_@", "s_setprio 1", "KF_BL0_@:"])
            if BAL == 1 and u == 5:
                extra.setdefault(1, []).extend([f"s_cmp_eq_u32 s20, {B2T}", "s_cbranch_scc0 KF_BL5_@", "s_setprio 0", "KF_BL5_@:"])
            if BAL == 2 and u in (0, 5):
                extra.setdefault(1, []).extend([f"s_cmp_eq_u32 s14, {int(u == 5)}", "s_setprio 0", f"s_cbranch_scc0 KF_BL{u}_@", "s_setprio 1", f"KF_BL{u}_@:"])
            if BAL == 3:
                if u in (0, 4, 7): extra.setdefault(1, []).append(f"s_setprio {2 - (0, 4, 7).index(u)}")
            if BAL == 4:
                extra.setdefault(0, []).extend([f"s_cmp_eq_u32 s14, {u & 1}", "s_setprio 0", f"s_cbranch_scc0 KF_BL{u}_@", "s_setprio 1", f"KF_BL{u}_@:"])
            for x in unit_code(u, extra, pw, prd): a(x)
        a("s_cbranch_scc1 KF_LOOP_@")
        if jj < 2: a("s_branch KF_LE")
    a = a0
    a.label("KF_LE")
    if TSC: a("s_memtime s[90:91]\ns_waitcnt lgkmcnt(0)\ns_sub_u32 s93, s90, s86\ns_mov_b32 s94, s84\ns_mov_b32 s95, s85")
    stamp(a, 6)
    a(f"""
    s_cmp_eq_u32 s14, 0
    s_cbranch_scc1 KF_EO
    s_setprio 2
    KF_EPW:
    ds_read_b32 v0, v5
    v_add_u32 v1, {98304}, v4
    s_waitcnt lgkmcnt(0)
    v_cmp_gt_u32 vcc, 9, v0
    s_cbranch_vccz KF_EPG
    s_sleep 1
    s_branch KF_EPW
    KF_EPG:
    """)
    for q in range(8): a(f"ds_write_b128 v4, {vr(OS+4*q,4)} offset:{1024*q}")
    for q in range(7): a(f"ds_read_b128 {vr(8+4*q,4)}, v1 offset:{1024*q}")
    a("v_and_b32 v0, 1023, v4")
    a("s_waitcnt lgkmcnt(7)")
    a(f"ds_read_b128 {vr(36,4)}, v1 offset:{1024*7}")
    a("s_barrier")
    stamp(a, 7)
    for q in range(8):
        a(f"s_waitcnt lgkmcnt({7-q})")
        a(f"v_pk_add_f32 {vr(OO+4*q,2)}, {vr(OO+4*q,2)}, {vr(8+4*q,2)}")
        a(f"v_pk_add_f32 {vr(OO+4*q+2,2)}, {vr(OO+4*q+2,2)}, {vr(10+4*q,2)}")
        a(f"v_cvt_pk_bf16_f32 v{40+2*q}, v{OO+4*q}, v{OO+4*q+1}")
        a(f"v_cvt_pk_bf16_f32 v{41+2*q}, v{OO+4*q+2}, v{OO+4*q+3}")
        a(f"v_min_u32 v{40+2*q}, -2, v{40+2*q}")
        a(f"v_min_u32 v{41+2*q}, -2, v{41+2*q}")
        if q & 1: a(f"global_store_dwordx4 v0, {vr(40+4*(q>>1),4)}, s[28:29] offset:{1024*(q>>1)}{SC}")
    a("s_branch KF_EQ")
    a(f"""
    KF_EO:
    s_setprio {EPR}
    v_add_u32 v1, 65536, v4
    v_and_b32 v0, 1023, v4
    s_sub_u32 s16, s9, 1
    s_and_b32 s16, s16, 3
    s_lshl_b32 s17, s16, 13
    s_add_u32 s17, s17, 65536
    v_add_u32 v2, s17, v0
    s_lshl_b32 s16, s16, 2
    s_add_u32 s16, s16, {L_FLG + 336}
    v_mov_b32 v3, s16
    s_lshl_b32 s16, s9, 2
    s_add_u32 s16, s16, {L_FLG + 336}
    v_mov_b32 v6, s16
    s_waitcnt lgkmcnt(0)
    KF_EW1:
    ds_read_b32 v8, v5
    s_waitcnt lgkmcnt(0)
    v_cmp_gt_u32 vcc, 8, v8
    s_cmp_eq_u32 vcc_lo, 0
    s_cbranch_scc1 KF_EG1
    s_sleep 2
    s_branch KF_EW1
    KF_EG1:
    """)
    for q in range(8): a(f"ds_write_b128 v1, {vr(OS+4*q,4)} offset:{1024*q}")
    a(f"""
    s_waitcnt lgkmcnt(0)
    ds_write_b32 v6, v{FS}
    KF_EW2:
    ds_read_b32 v8, v3
    s_waitcnt lgkmcnt(0)
    v_cmp_eq_u32 vcc, 0, v8
    s_cbranch_vccz KF_EG2
    s_sleep 2
    s_branch KF_EW2
    KF_EG2:
    """)
    for q in range(8): a(f"ds_read_b128 {vr(8+4*q,4)}, v2 offset:{1024*q}")
    for q in range(8):
        a(f"s_waitcnt lgkmcnt(7)")
        a(f"v_pk_add_f32 {vr(OO+4*q,2)}, {vr(OO+4*q,2)}, {vr(8+4*q,2)}")
        a(f"v_pk_add_f32 {vr(OO+4*q+2,2)}, {vr(OO+4*q+2,2)}, {vr(10+4*q,2)}")
        a(f"ds_write_b128 v1, {vr(OO+4*q,4)} offset:{32768+1024*q}")
    a(f"""
    s_lshl_b32 s16, s9, 11
    v_add_u32 v2, s16, v0
    s_waitcnt lgkmcnt(0)
    ds_write_b32 v6, v{FS} offset:16
    s_setprio 2
    s_waitcnt lgkmcnt(0)
    s_barrier
    """)
    stamp(a, 7)
    for w in range(4):
        for h in range(2): a(f"ds_read_b128 {vr(8+8*w+4*h,4)}, v2 offset:{8192*w+1024*h}")
    for w, wt in ((0, 4), (16, 0)):
        a(f"s_waitcnt lgkmcnt({wt})")
        for k in range(4): a(f"v_pk_add_f32 {vr(8+w+2*k,2)}, {vr(8+w+2*k,2)}, {vr(16+w+2*k,2)}")
    for k in range(4): a(f"v_pk_add_f32 {vr(8+2*k,2)}, {vr(8+2*k,2)}, {vr(24+2*k,2)}")
    for k in range(4): a(f"v_cvt_pk_bf16_f32 v{8+k}, v{8+2*k}, v{9+2*k}")
    for k in range(4): a(f"v_min_u32 v{8+k}, -2, v{8+k}")
    a(f"""
    global_store_dwordx4 v0, v[8:11], s[30:31]{SC}
    KF_EQ:
    s_cmp_lg_u32 s9, s8
    s_cbranch_scc1 KF_NQ
    s_lshl_b32 s16, s14, 2
    s_add_u32 s16, s16, {L_FLG + 304}
    v_mov_b32 v3, s16
    s_cmp_eq_u32 s14, 0
    s_cbranch_scc1 KF_Q0
    """)
    for s in range(4): a(f"ds_write_b128 v0, {vr(QS+4*s,4)} offset:{L_QS+4096+1024*s}")
    a("s_branch KF_Q1")
    a.label("KF_Q0")
    for s in range(4): a(f"ds_write_b128 v0, {vr(QO+4*s,4)} offset:{L_QS+1024*s}")
    a.label("KF_Q1")
    a(f"ds_write_b32 v3, v{FS}")
    a("s_waitcnt lgkmcnt(0)")
    a.label("KF_NQ")
    stamp(a, 8)
    ts_end(a)
    a("s_endpgm")
    for u in ("3_0", "8_0", "3_1", "8_1", "3_2", "8_2"):
        a.label(f"KF_SPIN{u}")
        if TSC:
            a(f"""
            s_add_u32 s96, s96, 1
            s_sub_u32 s83, 5, s20
            s_mul_i32 s83, s83, 6
            s_lshl_b32 s83, 1, s83
            s_add_u32 s{84 if u[0] == '3' else 85}, s{84 if u[0] == '3' else 85}, s83
            """)
        a(f"""
        s_sleep 1
        ds_read_b32 v{KF}, v{FA}
        s_waitcnt lgkmcnt(0)
        v_cmp_ge_u32 vcc, v{FS}, v{KF}
        s_cbranch_vccnz KF_SPIN{u}
        s_branch KF_GO{u}
        """)

    a.label("KF_L8")
    edge_addr()
    if DSW == 0: edge_loads()
    spf()
    pollset(a)
    a(f"s_waitcnt vmcnt({6 if DSW == 0 else 0})")
    if not SPF: stamp(a, 1)
    if DSW == 1: edge_loads()
    for x, y in zip(ln_chain(XA, FA_, TA, HBA, "s[68:69]"), ln_chain(XB, FB_, TB, 52, "s[70:71]")):
        if x is None: a("s_nop 0")
        else: a(x); a(y)
    a(f"""
    ds_write_b128 v62, {vr(HBA,4)}
    ds_write_b128 v63, v[52:55]
    """)
    if DSW == 2: edge_loads()
    a("s_branch KF_B2M")
    a.label("KF_PAD")
    a(f"""
    s_cmp_lt_u32 s6, 5
    s_cbranch_scc0 KF_SG
    s_lshl_b32 s16, s6, 12
    s_add_u32 s16, s16, 20480
    v_add_u32 v40, s16, v10
    v_mov_b64 v[36:37], 0
    v_mov_b64 v[38:39], 0
    """)
    for k in range(4): a(f"global_store_dwordx4 v40, v[36:39], s[72:73] offset:{1024*k}{SC}")
    a("s_nop 1")
    a("s_branch KF_SG")
    B63, AF, BF, D0, D1 = 28, 44, 76, 92, 108
    L_W = 65536
    a.label("KF_MLD")
    a(f"""
    s_setprio {MPR}
    v_lshrrev_b32 v1, 4, v9
    v_xor_b32 v1, v1, v9
    v_lshlrev_b32 v4, 4, v1
    v_xor_b32 v5, 64, v4
    s_and_b32 s16, s6, 1
    s_lshl_b32 s17, s16, 13
    s_add_u32 s17, s17, {L_W}
    s_mov_b32 m0, s17
    s_mov_b32 s62, 8192
    s_movk_i32 s18, 4096
    s_cmp_eq_u32 s16, 1
    s_waitcnt lgkmcnt(0)
    s_cselect_b32 s60, s{WKP}, s{WQP}
    s_cselect_b32 s61, s{WKP+1}, s{WQP+1}
    """)
    if DSW == -1: edge_ld(a)
    for k in range(4): a(f"buffer_load_dwordx4 v{4+(k&1)}, s[60:63], 0 offen offset:{1024*k} lds")
    a("s_add_u32 m0, s17, 4096")
    a("s_nop 0")
    for k in range(4): a(f"buffer_load_dwordx4 v{4+(k&1)}, s[60:63], s18 offen offset:{1024*k} lds")
    stamp(a, 0)
    a(f"""
    s_setprio 0
    s_barrier
    s_mov_b32 s4, s{WSP}
    s_mov_b32 s5, s{WSP+1}
    s_mov_b32 s80, s{DBGP}
    s_mov_b32 s81, s{DBGP+1}
    """)
    edge_addr()
    if DSW == 0: edge_loads()
    a(f"""
    v_and_b32 v1, 31, v9
    v_lshrrev_b32 v2, 5, v9
    """)
    pi_calc(a, 3, 1, 4)
    a(f"""
    v_bfe_u32 v4, v3, 1, 3
    v_xor_b32 v4, v4, v2
    v_lshlrev_b32 v4, 4, v4
    v_lshl_add_u32 v4, v3, 7, v4
    v_add_u32 v20, {L_W}, v4
    v_xor_b32 v21, 32, v20
    v_xor_b32 v22, 64, v20
    v_xor_b32 v23, 96, v20
    s_lshl_b32 s17, s16, 12
    v_add_u32 v24, s17, v20
    v_add_u32 v25, s17, v21
    v_add_u32 v26, s17, v22
    v_add_u32 v27, s17, v23
    v_lshlrev_b32 v2, 4, v2
    v_sub_u32 v12, {L_W + 8192 + 63*128 + 16}, v2
    s_mov_b32 s3, 0x80008000
    s_add_u32 s17, s17, {L_QA}
    v_add_u32 v14, s17, v10
    v_mov_b32 v16, {LOG2E_8:#x}
    s_lshl_b32 s16, s16, 2
    s_add_u32 s16, s16, {L_FLG + 320}
    v_mov_b32 v18, s16
    v_xor_b32 v13, 4, v18
    """)
    pollset(a)
    E6 = 6 if DSW == 0 else 0
    a(f"""
    s_setprio {MP2}
    s_waitcnt vmcnt({E6})
    ds_write_b32 v18, v18
    KF_MS:
    ds_read_b32 v19, v13
    s_waitcnt lgkmcnt(0)
    v_cmp_eq_u32 vcc, 0, v19
    s_cbranch_vccz KF_MG
    s_sleep 1
    s_branch KF_MS
    KF_MG:
    """)
    stamp(a, 1)
    for s in range(4):
        a(f"ds_read_b128 {vr(BF+4*s,4)}, v{24+s} offset:8192")
        a(f"ds_read_b128 {vr(AF+16+4*s,4)}, v{20+s} offset:4096")
    for s in range(4): a(f"ds_read_b128 {vr(B63+4*s,4)}, v12 offset:{96-32*s}")
    if DSW == 1: edge_loads()
    for s in range(4):
        a(f"s_waitcnt lgkmcnt({10-s})")
        a(mfma(D1, AF+16+4*s, BF+4*s, 0 if s == 0 else None))
        a(f"ds_read_b128 {vr(AF+4*s,4)}, v{20+s}")
    a(f"s_waitcnt lgkmcnt(4)")
    for k in range(16): a(f"v_xor_b32 v{B63+k}, s3, v{B63+k}")
    a("s_waitcnt lgkmcnt(0)")
    for s in range(4): a(mfma(D1, AF+16+4*s, B63+4*s))
    for s in range(4): a(mfma(D0, AF+4*s, BF+4*s, 0 if s == 0 else None))
    for s in range(4): a(mfma(D0, AF+4*s, B63+4*s))
    a(f"""
    s_nop 3
    v_mul_f32 v18, v16, v{D1+15}
    v_mul_f32 v20, v16, v{D1+15}
    s_nop 1
    v_permlane32_swap_b32 v18, v20
    """)
    for A_, Dx in ((1, D1), (0, D0)):
        for k in range(8): a(f"v_pk_fma_f32 {vr(Dx+2*k,2)}, {vr(Dx+2*k,2)}, v[16:17], v[20:21] op_sel_hi:[1,0,0] neg_lo:[0,0,1] neg_hi:[0,0,1]")
        for k in range(8): a(f"v_cvt_pk_bf16_f32 v{Dx+k}, v{Dx+2*k}, v{Dx+2*k+1}")
        for s in range(2): a(f"ds_write_b128 v14, {vr(Dx+4*s,4)} offset:{2048*A_+1024*s}")
    if DSW == 2: edge_loads()
    stamp(a, 4, 1)
    a(f"""
    s_cmp_eq_u32 s6, 10
    s_cbranch_scc1 KF_B2M
    v_and_b32 v12, 3, v9
    v_lshlrev_b32 v12, 2, v12
    s_mov_b32 s82, {TMO}
    s_lshl_b32 s17, s2, 7
    s_add_u32 s17, s17, {WS_FBN:#x}
    v_mov_b32 v13, s17
    v_mov_b32 v8, 4
    v_mov_b32 v18, {L_FLG + 296}
    s_setprio 0
    KF_CW1:
    global_load_dword v19, v12, s[80:81]{SC}
    s_waitcnt vmcnt(0)
    v_cmp_eq_u32 vcc, 0, v19
    s_cbranch_vccz KF_CG1
    s_sub_u32 s82, s82, 1
    s_cbranch_scc1 KF_CG1
    ds_read_b32 v19, v18
    s_waitcnt lgkmcnt(0)
    v_cmp_le_u32 vcc, {CWX}, v19
    s_cbranch_vccnz KF_B2A
    s_sleep 2
    s_branch KF_CW1
    KF_CG1:
    s_mov_b64 exec, 1
    ds_write_b32 v18, v8 offset:36
    ds_add_rtn_u32 v19, v18, v8
    s_waitcnt lgkmcnt(0)
    v_cmp_eq_u32 vcc, 20, v19
    s_cbranch_vccz KF_A1
    global_store_dword v13, v8, s[4:5]{SC}
    KF_A1:
    s_mov_b64 exec, -1
    """)
    a.label("KF_B2M")
    stamp(a, 8, 1)
    a(f"""
    v_mov_b32 v18, {L_FLG + 296}
    s_waitcnt lgkmcnt(0)
    s_barrier
    KF_CL:
    ds_read_b32 v19, v18 offset:36
    s_waitcnt lgkmcnt(0)
    v_cmp_eq_u32 vcc, 0, v19
    s_cbranch_vccz KF_CE
    s_sleep 1
    s_branch KF_CL
    KF_B2A:
    s_barrier
    KF_CW2:
    global_load_dword v19, v12, s[80:81]{SC}
    s_waitcnt vmcnt(0)
    v_cmp_eq_u32 vcc, 0, v19
    s_cbranch_vccz KF_CG2
    s_sub_u32 s82, s82, 1
    s_cbranch_scc1 KF_CG2
    s_sleep 2
    s_branch KF_CW2
    KF_CG2:
    s_mov_b64 exec, 1
    ds_write_b32 v18, v8 offset:36
    ds_add_rtn_u32 v19, v18, v8
    s_waitcnt lgkmcnt(0)
    v_cmp_eq_u32 vcc, 20, v19
    s_cbranch_vccz KF_A2
    global_store_dword v13, v8, s[4:5]{SC}
    KF_A2:
    s_mov_b64 exec, -1
    KF_CE:
    s_mov_b64 exec, s[76:77]
    global_load_dword v3, v2, s[4:5]{SC}
    s_mov_b64 exec, -1
    """)
    stamp(a, 2)
    from kf_help import helper
    helper(a)
    a.label("KF_END")
    a("s_endpgm")
    return a, 168
```

```python
from kf import *

SPRIO = int(os.environ.get("SPRIO", "3"))
SY0 = int(os.environ.get("SY0", "1"))
BSL = int(os.environ.get("BSL", "6"))
PSL = int(os.environ.get("PSL", "2"))
FSL = int(os.environ.get("FSL", "2"))
FSL0 = int(os.environ.get("FSL0", "16"))

def helper(a):
    EN = 44
    AD = 68
    PR = [16, 128]
    DT = [44, 84]
    CY = [36, 148]
    LA = [9, 10]
    DG = 152
    def dma(a):
        a(f"s_mov_b32 m0, s15")
        a(f"s_add_u32 s18, s14, 4096")
        for k in range(4): a(f"buffer_load_dwordx4 v1, s[32:35], s14 offen offset:{1024*k}{SC} lds")
        a(f"s_add_u32 m0, s15, 4096")
        a(f"s_add_u32 s14, s14, 32768")
        for k in range(4): a(f"buffer_load_dwordx4 v1, s[32:35], s18 offen offset:{1024*k}{SC} lds")
        a(f"s_add_u32 s15, s15, 32768")
        a(f"s_and_b32 s15, s15, 0x1ffff")
    def service(a, X):
        a(f"""
        s_cmp_ge_u32 s13, s23
        s_cbranch_scc1 KF_PB{X}
        s_cmp_eq_u32 s23, 10
        s_cselect_b32 s13, 11, s23
        v_mov_b32 v11, s13
        ds_write_b32 v42, v11
        """)
        a.label(f"KF_PB{X}")
        if X in ("W", "A", "B", "C"):
            a("s_cmp_lg_u64 s[86:87], 0")
            a(f"s_cbranch_scc1 KF_ND{X}")
        a(f"""
        s_cmp_ge_u32 s23, 10
        s_cbranch_scc1 KF_ND{X}
        ds_read_b32 v11, v42 offset:16
        s_sub_u32 s16, s23, 3
        s_waitcnt lgkmcnt(0)
        v_cmp_gt_u32 vcc, s16, v11
        s_cbranch_vccnz KF_ND{X}
        s_add_u32 s23, s23, 1
        """)
        dma(a)
        a.label(f"KF_ND{X}")

    a.label("KF_HELP")
    AV, RV, PX, OFV = 44, 54, 88, 64
    a(f"""
    s_setprio 3
    s_sub_u32 s9, s6, 8                  ; hw
    v_mov_b32 v0, v9                     ; lane
    v_mov_b32 v1, v10                    ; lane*16
    s_mul_i32 s16, s9, 3072
    s_min_u32 s16, s16, 8192
    s_add_u32 s17, s16, {L_ES}
    v_add_u32 v71, s17, v1
    s_mul_i32 s24, s2, {ESTR}
    s_add_u32 s24, s24, s16
    s_add_u32 s24, s24, {WS_ENT:#x}
    v_add_u32 v72, s24, v1
    s_mov_b32 s82, {TMO}
    s_mul_i32 s14, s8, {80*4096}
    s_lshl_b32 s15, s9, 13
    s_add_u32 s15, s15, 32768
    s_add_u32 s14, s14, s15
    s_mov_b32 s32, s4
    s_mov_b32 s33, s5
    s_mov_b32 s34, {320*4096:#x}
    s_mov_b32 s35, 0x20000
    v_and_b32 v14, 7, v0
    s_lshl_b32 s16, s9, 2
    s_add_u32 s16, s16, {L_FLG}
    v_lshl_add_u32 v42, v14, 5, s16
    s_lshl_b32 s16, s2, 7
    s_add_u32 s16, s16, {WS_FBN:#x}
    v_mov_b32 v40, s16
    v_mov_b32 v13, 2
    v_mov_b32 v7, {L_FLG + 288}
    v_mov_b32 v8, 4
    v_mov_b32 v15, 1
    v_add_u32 v70, {L_BIN}, v1
    s_andn2_b32 s86, s86, s76
    s_waitcnt vmcnt(0)
    """)
    stamp(a, 5, 1)
    def pol():
        a(f"""
        s_mov_b64 exec, s[76:77]
        global_load_dword v3, v2, s[4:5]{SC}
        s_mov_b64 exec, -1
        """)
    def upd():
        a(f"""
        v_cmp_eq_u32 vcc, 0, v3
        s_sub_u32 s82, s82, 1
        s_cselect_b32 s82, 0, s82
        s_cselect_b32 s76, 0, s76
        s_and_b32 s76, s76, vcc_lo
        """)
    def sync(off, n, lab):
        a(f"""
        s_mov_b64 exec, 1
        s_waitcnt lgkmcnt(0)
        ds_add_rtn_u32 v4, v7, v15 offset:{off}
        s_waitcnt lgkmcnt(0)
        v_cmp_eq_u32 vcc, {n-1}, v4
        s_cbranch_vccnz {lab}G
        {lab}:
        s_sleep 1
        ds_read_b32 v4, v7 offset:{off}
        s_waitcnt lgkmcnt(0)
        v_cmp_eq_u32 vcc, {n}, v4
        s_cbranch_vccz {lab}
        {lab}G:
        s_mov_b64 exec, -1
        """)
    a.label("KF_Z1")
    upd()
    a("s_and_b32 s17, s76, s78")
    a("s_cbranch_scc0 KF_Z2")
    a(f"s_sleep {PSL}")
    pol()
    a("s_waitcnt vmcnt(0)")
    a("s_branch KF_Z1")
    a.label("KF_Z2")
    dma(a)
    stamp(a, 4)
    a("s_cmp_eq_u32 s76, 0")
    a("s_cbranch_scc1 KF_Z6")
    a.label("KF_Z5")
    pol()
    a("s_waitcnt vmcnt(0)")
    a("ds_write_b32 v42, v13")
    upd()
    a("s_cbranch_scc0 KF_Z6")
    a(f"s_sleep {PSL}")
    a("s_branch KF_Z5")
    a.label("KF_Z6")
    dma(a)
    a("s_waitcnt vmcnt(8)")
    a("ds_write_b32 v42, v13")
    if SY0: sync(40, 4, "KF_Y0")
    edge_ld(a)
    a(f"""
    s_mov_b64 exec, s[86:87]
    global_load_dword v9, v2, s[4:5]{SC}
    s_mov_b64 exec, -1
    v_mov_b32 v11, 3
    s_waitcnt vmcnt(7)
    ds_write_b32 v42, v11                ; FULL = 3
    """)
    a(f"""
    KF_Z3:
    ds_read_b32 v4, v7 offset:28
    s_waitcnt lgkmcnt(0)
    v_cmp_gt_u32 vcc, 8, v4
    s_cbranch_vccz KF_Z4
    s_sleep 1
    s_branch KF_Z3
    KF_Z4:
    """)
    dma(a)
    a(f"""
    s_waitcnt vmcnt(8)
    v_cmp_eq_u32 vcc, 0, v9
    s_and_b64 s[86:87], s[86:87], vcc
    """)
    stamp(a, 1, 1)
    for k in range(10):
        a(f"v_mul_u32_u24 v{AV+k}, 52429, v{DV+k}")
        a(f"v_lshrrev_b32 v{AV+k}, 19, v{AV+k}")
        a(f"v_and_b32 v{AV+k}, 0x3fc, v{AV+k}")
        a(f"v_mad_i32_i24 v{DV+k}, v{AV+k}, -10, v{DV+k}")
        a(f"v_add_u32 v{AV+k}, {L_BIN}, v{AV+k}")
        a(f"ds_add_rtn_u32 v{RV+k}, v{AV+k}, v8")
    for k in range(10):
        a(f"v_lshl_or_b32 v{SV+k}, v{DV+k}, 18, v{SV+k}")
    a(f"""
    s_mov_b32 s23, 4
    s_mov_b32 s13, 3
    """)
    sync(24, 4, "KF_Y1")
    stamp(a, 6, 1)
    a(f"ds_read_b128 {vr(PX,4)}, v70")
    for k in range(10): a(f"v_add_u32 v{RV+k}, {L_ES}, v{RV+k}")
    c0, t1, t2, tot, sc, st = PX, PX+4, PX+5, PX+6, PX+7, PX+8
    a(f"""
    s_waitcnt lgkmcnt(0)
    v_add_u32 v{t1}, v{c0}, v{c0+1}
    v_add_u32 v{t2}, v{t1}, v{c0+2}
    v_add_u32 v{tot}, v{t2}, v{c0+3}
    v_mov_b32 v{sc}, v{tot}
    """)
    dp = ["row_shr:1 row_mask:0xf bank_mask:0xf bound_ctrl:0", "row_shr:2 row_mask:0xf bank_mask:0xf bound_ctrl:0",
          "row_shr:4 row_mask:0xf bank_mask:0xf bound_ctrl:0", "row_shr:8 row_mask:0xf bank_mask:0xf bound_ctrl:0",
          "row_bcast:15 row_mask:0xa bank_mask:0xf", "row_bcast:31 row_mask:0xc bank_mask:0xf"]
    for i, m in enumerate(dp):
        a("s_nop 1")
        a(f"v_add_u32_dpp v{sc}, v{sc}, v{sc} {m}")
    a(f"""
    v_sub_u32 v{st}, v{sc}, v{tot}
    v_add_u32 v{st+1}, v{st}, v{c0}
    v_add_u32 v{st+2}, v{st}, v{t1}
    v_add_u32 v{st+3}, v{st}, v{t2}
    ds_write_b128 v70, {vr(st,4)} offset:1024
    """)
    for k in range(10): a(f"ds_read_b32 v{DV+k}, v{AV+k} offset:1024")
    for k in range(4): a(f"v_lshl_or_b32 v{OFV+k}, v{c0+k}, 16, v{st+k}")
    for k in range(10):
        a(f"s_waitcnt lgkmcnt(9)")
        a(f"v_add_u32 v{DV+k}, v{DV+k}, v{RV+k}")
        a(f"ds_write_b32 v{DV+k}, v{SV+k}")
    a(f"ds_write_b128 v70, {vr(OFV,4)} offset:{L_ES + 10240 - L_BIN}")
    a("s_waitcnt vmcnt(0)")
    service(a, "A")
    sync(28, 12, "KF_Y2")
    stamp(a, 3)
    for k in range(3): a(f"ds_read_b128 {vr(44+4*k,4)}, v71 offset:{1024*k}")
    a(f"""
    """)
    a("s_cmp_eq_u32 s23, 4")
    a("s_cbranch_scc0 KF_NDB")
    service(a, "B")
    a(f"""
    s_cmp_ge_u32 s2, 250
    s_waitcnt lgkmcnt(0)
    s_cbranch_scc1 KF_NG
    """)
    for k in range(3): a(f"global_store_dwordx4 v72, {vr(44+4*k,4)}, s[4:5] offset:{1024*k}{SC}")
    a.label("KF_NG")
    a(f"""
    s_lshl_b32 s16, s9, 6
    v_add_u32 v8, s16, v0                ; producer p
    s_lshl_b32 s17, s2, 2
    v_mul_u32_u24 v12, {ESTR}, v8
    s_add_u32 s17, s17, 10240
    v_add_u32 v3, s17, v12
    s_mul_i32 s24, s2, 80
    s_mul_i32 s16, s9, 20
    s_add_u32 s16, s16, s24
    v_lshrrev_b32 v6, 5, v0
    v_lshl_add_u32 v6, v6, 1, s16
    v_lshlrev_b32 v5, 7, v8
    v_add_u32 v5, {WS_FBN:#x}, v5
    s_movk_i32 s83, {KF_GRID}
    v_cmp_gt_u32 s[84:85], s83, v8
    s_mov_b32 s13, s23
    v_mov_b32 v11, s23
    s_cmp_ge_u32 s2, 250
    s_cbranch_scc1 KF_NW
    s_waitcnt vmcnt(3)
    ds_write_b32 v42, v11
    KF_NW:
    s_waitcnt vmcnt(0)
    ds_write_b32 v42, v11
    s_mov_b64 exec, 1
    ds_add_rtn_u32 v4, v7, v13
    s_waitcnt lgkmcnt(0)
    v_cmp_eq_u32 vcc, 6, v4
    s_cbranch_vccz KF_NA
    global_store_dword v40, v13, s[4:5] offset:4{SC}
    KF_NA:
    s_mov_b64 exec, -1
    """)
    stamp(a, 7, 1)
    service(a, "C")
    a(f"s_setprio {SPRIO}")
    stamp(a, 5)
    srd(a, 68, 42, 43, 0, N*2)
    srd(a, 40, 4, 5, WS_ENT, 250*ESTR)
    srd(a, 44, 4, 5, WS_H16, N, stride=128)
    a(f"v_lshlrev_b32 v15, 4, v14")
    for X in range(2):
        for k in range(10): a(f"v_mov_b64 {vr(PR[X]+2*k,2)}, v[14:15]")
    for k in range(3): a(f"v_mov_b64 {vr(DG+2*k,2)}, 0")
    for k in range(5): a(f"buffer_load_short_d16_hi v{DG+k}, v6, s[68:71], 0 offen offset:{4*k}")
    a(f"""
    s_mul_i32 s16, s9, 1280
    s_add_u32 s16, s16, {L_AGG}
    v_lshl_add_u32 v41, v0, 2, s16
    """)
    a.label("KF_BW")
    a(f"""
    s_mov_b64 exec, s[86:87]
    s_cbranch_execz KF_BX
    global_load_dword v9, v2, s[4:5]{SC}
    KF_BX:
    s_mov_b64 exec, s[84:85]
    global_load_dword v4, v5, s[4:5] offset:4{SC}
    s_waitcnt vmcnt(0)
    v_cmp_eq_u32 s[84:85], 0, v4
    s_mov_b64 exec, -1
    v_cmp_eq_u32 vcc, 0, v9
    s_and_b64 s[86:87], s[86:87], vcc
    """)
    service(a, "W")
    a(f"""
    s_or_b64 vcc, s[84:85], s[86:87]
    s_cbranch_scc0 KF_BR
    s_sub_u32 s82, s82, 1
    s_cbranch_scc1 KF_TO
    s_sleep {BSL}
    s_branch KF_BW
    """)
    a.label("KF_TO")
    a(f"""
    s_mov_b32 s82, 0
    s_mov_b32 s42, 0
    """)
    a.label("KF_BR")
    stamp(a, 6)
    a(f"""
    buffer_load_dword v4, v3, s[40:43], 0 offen{SC}
    s_waitcnt vmcnt(0)
    v_and_b32 v5, 0xffff, v4
    v_add_u32 v12, v12, v5
    v_lshrrev_b32 v4, 18, v4
    """)
    def entloads(a):
        for k in range(6):
            a(f"v_cmpx_lt_i32 vcc, {4*k}, v4")
            a(f"buffer_load_dwordx4 {vr(EN+4*k,4)}, v12, s[40:43], 0 offen offset:{16*k}{SC}")
        a("s_mov_b64 exec, -1")
    a.label("KF_EL")
    entloads(a)
    a("s_waitcnt vmcnt(0)")
    service(a, "E")
    assert L_CNT == 2 << 16
    def sortgrp(g):
        for k in range(8*g, 8*g+8):
            a(f"v_alignbit_b32 v{AD+k}, 2, v{EN+k}, 16")
            a(f"v_cmpx_lt_i32 s[{52+2*(k&7)}:{53+2*(k&7)}], {k}, v4")
            a(f"ds_add_rtn_u32 v{AD+k}, v{AD+k}, v13")
        for k in range(8*g, 8*g+8):
            a(f"s_mov_b64 exec, s[{52+2*(k&7)}:{53+2*(k&7)}]")
            a(f"s_waitcnt lgkmcnt(7)")
            a(f"ds_write_b16 v{AD+k}, v{EN+k}")
    sortgrp(0)
    a("s_cbranch_execz KF_SORTED")
    sortgrp(1)
    a("s_cbranch_execz KF_SORTED")
    sortgrp(2)
    a(f"""
    s_mov_b64 exec, -1
    v_subrev_u32 v4, 24, v4
    v_add_u32 v12, 96, v12
    v_cmp_lt_i32 vcc, 0, v4
    s_waitcnt lgkmcnt(0)
    s_cbranch_vccnz KF_EL
    """)
    a.label("KF_SORTED")
    a(f"""
    s_mov_b64 exec, -1
    s_lshl_b32 s16, s9, 2
    s_add_u32 s16, s16, {L_FLG + 256}
    v_mov_b32 v43, s16
    s_waitcnt lgkmcnt(0)
    ds_write_b32 v43, v13                ; SORTED[hw]
    v_and_b32 v3, 3, v0
    v_lshlrev_b32 v3, 2, v3
    v_add_u32 v3, {L_FLG + 256}, v3
    v_lshlrev_b32 v6, 2, v0
    v_add_u32 v6, {L_CNT}, v6
    v_mul_u32_u24 v7, {LSTR}, v0
    v_add_u32 v7, {L_LIST}, v7
    s_mov_b32 s19, -1
    s_mov_b32 s20, 0                     ; A remaining
    s_mov_b32 s25, -1
    s_mov_b32 s26, 0
    s_mov_b32 s21, 0
    s_mov_b32 s22, 0
    s_mov_b32 s12, 0
    s_mov_b32 s31, 0
    s_mov_b32 s27, 0
    s_mov_b32 s28, 0
    v_lshrrev_b32 v15, 3, v0
    v_lshlrev_b32 v15, 1, v15            ; group*2
    v_add_u32 v15, {L_LIST - 160}, v15
    v_lshlrev_b32 v5, 4, v14             ; c*16 bytes
    v_lshrrev_b32 v8, 4, v0
    v_lshl_add_u32 v5, v8, 2, v5         ; + r*4 bytes
    v_add_u32 v5, {L_AGG}, v5
    v_mov_b32 v{LA[0]}, v7
    v_mov_b32 v{LA[1]}, v7
    s_lshl_b32 s16, s2, 2
    s_add_u32 s16, s16, s9
    s_mul_i32 s16, s16, 5120
    s_add_u32 s16, s16, {WS_OUT + 1024:#x}
    v_add_u32 v8, s16, v1
    v_mov_b64 v[36:37], -1
    v_mov_b64 v[38:39], -1
    """)
    for k in range(5): a(f"global_store_dwordx4 v8, v[36:39], s[4:5] offset:{1024*k-1024}{SC}")
    a(f"s_setprio {HPRIO}")
    if not TSP: stamp(a, 1)
    a.label("KF_PER")
    for X in range(2):
        sI, sR, sC, sD = (19, 20, 27, 77) if X == 0 else (25, 26, 28, 78)
        sIo = 25 if X == 0 else 19
        D = DT[X]; C = CY[X]
        a(f"""
        s_waitcnt vmcnt(10)
        s_cmp_lt_i32 s{sIo}, 0
        s_cbranch_scc0 KF_SV{X}
        s_waitcnt vmcnt(0)
        """)
        a.label(f"KF_SV{X}")
        service(a, X)
        if X == 0:
            a(f"""
            s_cmp_lg_u32 s12, 0
            s_cbranch_scc1 KF_RDY
            ds_read_b32 v11, v3
            s_waitcnt lgkmcnt(0)
            v_cmp_eq_u32 vcc, 0, v11
            s_cbranch_vccnz KF_IDLE
            ds_read_b32 v4, v6
            s_mov_b32 s12, 1
            s_mul_i32 s21, s9, 10
            s_add_u32 s22, s21, 10
            s_cmp_ge_u32 s2, 250
            s_cselect_b32 s22, s21, s22
            s_waitcnt lgkmcnt(0)
            v_sub_u32 v4, v4, v7
            v_cmp_lt_u32 vcc, {2*CAP}, v4
            s_cbranch_vccz KF_RDY
            s_mov_b32 s31, 1
            s_mov_b32 s22, s21
            """)
            a.label("KF_RDY")
        a(f"""
        s_mov_b32 s29, s{sI}
        s_mov_b32 s30, s{sR}
        s_cmp_gt_i32 s{sR}, 0
        s_cbranch_scc1 KF_CONT{X}
        s_mov_b32 s{sI}, -1
        s_cmp_ge_u32 s21, s22
        s_cbranch_scc1 KF_CONS{X}
        s_mov_b32 s{sI}, s21
        v_readlane_b32 s{sR}, v4, s21
        s_mul_i32 s16, s21, {LSTR}
        s_add_u32 s21, s21, 1
        v_add_u32 v{LA[X]}, s16, v15
        s_branch KF_RD{X}
        """)
        a.label(f"KF_CONT{X}")
        a(f"v_add_u32 v{LA[X]}, 160, v{LA[X]}")
        a.label(f"KF_RD{X}")
        a(f"s_sub_i32 s{sR}, s{sR}, 160")
        for k in range(10): a(f"ds_read_u16 v{PR[X]+2*k}, v{LA[X]} offset:{160+16*k}")
        a.label(f"KF_CONS{X}")
        a(f"""
        s_cmp_lt_i32 s29, 0
        s_cbranch_scc1 KF_ISS{X}
        s_cmp_le_i32 s30, {128-160}
        s_cbranch_scc1 KF_A8{X}
        """)
        for r in range(4): a(f"v_pk_add_f16 v{D+r}, v{D+r}, v{D+32+r}")
        a(f"""
        s_cmp_le_i32 s30, {144-160}
        s_cbranch_scc1 KF_A8{X}
        """)
        for r in range(4): a(f"v_pk_add_f16 v{D+4+r}, v{D+4+r}, v{D+36+r}")
        a.label(f"KF_A8{X}")
        for st in (16, 8, 4):
            for r in range(st): a(f"v_pk_add_f16 v{D+r}, v{D+r}, v{D+st+r}")
        a(f"""
        s_max_i32 s16, s{sC}, s30
        s_cmp_gt_i32 s16, 0
        s_cbranch_scc1 KF_MC{X}
        """)
        a.label(f"KF_FIN{X}")
        a(f"""
        s_lshl_b32 s29, s29, 7
        v_permlane32_swap_b32 v{D}, v{D+2}
        v_permlane32_swap_b32 v{D+1}, v{D+3}
        v_pk_add_f16 v{D}, v{D}, v{D+2}
        v_pk_add_f16 v{D+1}, v{D+1}, v{D+3}
        v_add_u32 v8, s29, v5
        s_nop 0
        v_permlane16_swap_b32 v{D}, v{D+1}
        v_pk_add_f16 v{D}, v{D}, v{D+1}
        s_nop 1
        v_mov_b32_dpp v{D+1}, v{D} row_ror:8 row_mask:0xf bank_mask:0xf
        v_pk_add_f16 v11, v{D}, v{D+1}
        ds_write_b32 v8, v11
        """)
        a.label(f"KF_ISS{X}")
        a(f"""
        s_cmp_lt_i32 s{sI}, 0
        s_cbranch_scc1 KF_NXT{X}
        s_waitcnt lgkmcnt(0)
        """)
        for k in range(10):
            a(f"buffer_load_dwordx4 {vr(D+4*k,4)}, {vr(PR[X]+2*k,2)}, s[44:47], 0 idxen offen{SC}")
        a.label(f"KF_NXT{X}")
    a(f"""
    s_and_b32 s16, s19, s25
    s_cmp_eq_u32 s16, -1
    s_cbranch_scc0 KF_PER
    s_cmp_eq_u32 s13, 11
    s_cbranch_scc1 KF_HDONE
    """)
    a.label("KF_IDLE")
    a("""
    s_sleep 4
    s_branch KF_PER
    """)
    for X in range(2):
        sC = 27 if X == 0 else 28
        D = DT[X]; C = CY[X]
        a.label(f"KF_MC{X}")
        a(f"""
        s_cmp_eq_u32 s{sC}, 0
        s_cbranch_scc1 KF_MD{X}
        """)
        for r in range(4): a(f"v_pk_add_f16 v{D+r}, v{D+r}, v{C+r}")
        a.label(f"KF_MD{X}")
        a(f"""
        s_mov_b32 s{sC}, 0
        s_cmp_gt_i32 s30, 0
        s_cbranch_scc0 KF_FIN{X}
        s_mov_b32 s{sC}, 1
        """)
        for r in range(4): a(f"v_mov_b32 v{C+r}, v{D+r}")
        a(f"s_branch KF_ISS{X}")
    a.label("KF_HDONE")
    a(f"""
    s_cmp_eq_u32 s31, 0
    s_cbranch_scc0 KF_SLOW
    s_setprio {SPRIO}
    """)
    for k in range(5): a(f"ds_read_b32 v{16+k}, v41 offset:{256*k}")
    for k in range(5):
        a(f"""
        s_waitcnt lgkmcnt(4)
        v_fma_mix_f32 v22, v{16+k}, v{DG+k}, 0 op_sel:[0,0,0] op_sel_hi:[1,0,0]
        v_fma_mix_f32 v23, v{16+k}, v{DG+k}, 0 op_sel:[1,0,0] op_sel_hi:[1,0,0]
        v_cvt_pk_bf16_f32 v{16+k}, v22, v23
        ds_write_b32 v41, v{16+k} offset:{256*k}
        """)
    WV_, WM_, Y0, AG, XR, ACC, PD = 16, 32, 48, 64, 80, 88, 104
    a.label("KF_FS")
    stamp(a, 7)
    a(f"""
    s_waitcnt vmcnt(0) lgkmcnt(0)
    ds_write_b32 v43, v13 offset:16      ; GDONE[hw]
    v_mov_b32 v7, {L_FLG + 292}
    s_mov_b64 exec, 1
    ds_add_rtn_u32 v4, v7, v13
    s_waitcnt lgkmcnt(0)
    v_cmp_eq_u32 vcc, 6, v4
    s_cbranch_vccz KF_NB
    global_store_dword v40, v13, s[4:5] offset:8{SC}
    """)
    a.label("KF_NB")
    a(f"""
    s_mov_b64 exec, -1
    s_cmp_ge_u32 s2, 250
    s_cbranch_scc0 KF_F2
    s_barrier
    """)
    ts_end(a, True)
    a("s_endpgm")
    a.label("KF_F2")
    a(f"""
    s_load_dwordx2 s[48:49], s[0:1], 0
    s_load_dwordx2 s[52:53], s[0:1], 72
    s_lshr_b32 s19, s9, 1                ; cb
    s_and_b32 s20, s9, 1                 ; ob
    v_and_b32 v4, 31, v0                 ; n
    v_lshrrev_b32 v5, 5, v0              ; h
    v_and_b32 v6, 7, v0
    v_add_u32 v7, 32, v6
    s_lshl_b32 s16, s8, 3
    v_add_u32 v6, s16, v6
    s_cmp_eq_u32 s19, 1
    s_cselect_b64 vcc, -1, 0
    s_cselect_b32 s21, 4, s8             ; block
    s_cselect_b32 s22, 8, 64
    v_cndmask_b32 v7, v4, v7, vcc
    v_cndmask_b32 v6, v4, v6, vcc
    v_lshl_add_u32 v6, v5, 5, v6
    v_lshlrev_b32 v6, 4, v6
    v_lshlrev_b32 v8, 4, v5
    v_lshl_add_u32 v8, v7, 7, v8         ; row*128 + h*16
    v_add_u32 v9, {L_AGG}, v8
    s_mul_i32 s16, s2, 5120
    s_lshl_b32 s17, s20, 6
    s_add_u32 s16, s16, s17
    v_add_u32 v8, s16, v8
    v_cmp_le_u32 vcc, s22, v4
    v_mov_b32 v10, 0x80000000
    v_and_b32 v12, 3, v0
    v_cndmask_b32 v10, v8, v10, vcc
    v_lshlrev_b32 v12, 7, v12
    s_lshl_b32 s16, s7, 9
    s_add_u32 s16, s16, {WS_FBN + 8:#x}
    v_add_u32 v14, s16, v12
    v_lshrrev_b32 v12, 5, v12
    s_mov_b32 s50, {N*128:#x}
    s_mov_b32 s51, 0x20000
    s_mov_b32 s54, {N*128:#x}
    s_mov_b32 s55, 0x20000
    s_lshl_b32 s16, s20, 12
    s_add_u32 s16, s16, {WS_W:#x}
    s_add_u32 s56, s4, s16
    s_addc_u32 s57, s5, 0
    s_add_u32 s58, s56, 8192
    s_addc_u32 s59, s57, 0
    s_mul_i32 s16, s7, {4*20480}
    s_lshl_b32 s17, s21, 12
    s_add_u32 s16, s16, s17
    s_add_u32 s16, s16, {WS_OUT:#x}
    """)
    for s in range(4):
        a(f"s_add_u32 s{60+2*s}, s4, s16")
        a(f"s_addc_u32 s{61+2*s}, s5, 0")
        if s < 3: a(f"s_add_u32 s16, s16, 20480")
    a("s_waitcnt lgkmcnt(0)")
    for s in range(2): a(f"buffer_load_dwordx4 {vr(XR+4*s,4)}, v8, s[48:51], 0 offen offset:{32*s}")
    a.label("KF_WW")
    a(f"""
    global_load_dword v11, v12, s[80:81] offset:16{SC}
    s_waitcnt vmcnt(0)
    v_cmp_eq_u32 vcc, 0, v11
    s_cbranch_vccz KF_WG
    s_sub_u32 s82, s82, 1
    s_cbranch_scc1 KF_WG
    s_sleep 12
    s_branch KF_WW
    """)
    a.label("KF_WG")
    for s in range(4): a(f"global_load_dwordx4 {vr(WM_+4*s,4)}, v1, s[56:57] offset:{1024*s}{SC}")
    for s in range(4): a(f"global_load_dwordx4 {vr(WV_+4*s,4)}, v1, s[58:59] offset:{1024*s}{SC}")
    a("s_mov_b32 s16, 0xffff0000")
    for k in range(8):
        a(f"v_lshlrev_b32 v{Y0+2*k}, 16, v{XR+k}")
        a(f"v_and_b32 v{Y0+2*k+1}, s16, v{XR+k}")
    a.label("KF_GW")
    a(f"""
    ds_read_b32 v11, v3 offset:16
    s_waitcnt lgkmcnt(0)
    v_cmp_eq_u32 vcc, 0, v11
    s_cbranch_vccz KF_GG
    s_sleep 4
    s_branch KF_GW
    """)
    a.label("KF_GG")
    for s in range(4): a(f"ds_read_b128 {vr(AG+4*s,4)}, v9 offset:{32*s}")
    a("s_waitcnt vmcnt(0) lgkmcnt(0)")
    for s in range(4): a(mfma(Y0, WM_+4*s, AG+4*s))
    for k in range(8): a(f"v_mov_b64 {vr(ACC+2*k,2)}, 0")
    a("s_mov_b32 s23, 15")
    a(f"""
    s_cmp_eq_u32 s42, 0
    s_cselect_b32 s82, 0, {TMO2}
    s_setprio 0
    s_barrier
    """)
    stamp(a, 8)
    a.label("KF_OW")
    a(f"""
    global_load_dword v11, v14, s[4:5]{SC}
    s_sleep {FSL0}
    s_waitcnt vmcnt(0)
    v_cmp_eq_u32 vcc, 0, v11
    s_cbranch_vccz KF_OG
    s_sub_u32 s82, s82, 1
    s_cbranch_scc0 KF_OW
    s_mov_b32 s82, 0
    """)
    a.label("KF_OG")
    def ploads(k):
        for s in range(k, 4):
            for u in range(4):
                a(f"global_load_dwordx4 {vr(PD+16*s+4*u,4)}, v6, s[{60+2*s}:{61+2*s}] offset:{1024*u}{SC}")
    def chk(s, t):
        B = PD + 16*s
        a(f"""
        v_max3_u32 v12, v{B}, v{B+1}, v{B+2}
        v_max3_u32 v13, v{B+3}, v{B+4}, v{B+5}
        v_max3_u32 v14, v{B+6}, v{B+7}, v{B+8}
        v_max3_u32 v15, v{B+9}, v{B+10}, v{B+11}
        v_max3_u32 v12, v12, v{B+12}, v{B+13}
        v_max3_u32 v13, v13, v{B+14}, v{B+15}
        v_max3_u32 v12, v12, v14, v15
        v_max_u32 v12, v12, v13
        v_cmp_eq_u32 vcc, -1, v12
        s_cbranch_vccnz KF_X{t}{s}
        s_bitset0_b32 s23, {s}
        """)
        for u in range(4): a(mfma(ACC, WV_+4*u, B+4*u))
        a.label(f"KF_X{t}{s}")
    ploads(0)
    for s in range(4):
        a(f"s_waitcnt vmcnt({4*(3-s)})")
        chk(s, "a")
    a("s_cmp_lg_u32 s23, 0")
    a("s_cbranch_scc1 KF_RT")
    a.label("KF_RE")
    a(f"""
    v_and_b32 v12, s16, v{PD+15}
    v_and_b32 v13, s16, v{PD+31}
    v_and_b32 v14, s16, v{PD+47}
    v_and_b32 v15, s16, v{PD+63}
    v_add_f32 v12, v12, v13
    v_add_f32 v14, v14, v15
    v_add_f32 v13, v12, v14
    v_add_f32 v12, v12, v14
    s_mov_b32 s17, {0 if FORCEFB else 0x5D800000 - 0x21800000:#x}
    s_nop 0
    v_permlane32_swap_b32 v12, v13
    v_subrev_u32 v14, 0x21800000, v13
    v_cmp_le_u32 vcc, s17, v14
    s_cbranch_vccnz KF_FB
    """)
    a.label("KF_FT")
    a(f"""
    v_rcp_f32 v12, v13
    s_nop 2
    """)
    for k in range(8): a(f"v_pk_fma_f32 {vr(ACC+2*k,2)}, {vr(ACC+2*k,2)}, v[12:13], {vr(Y0+2*k,2)} op_sel_hi:[1,0,1]")
    for k in range(8):
        a(f"v_cvt_pk_bf16_f32 v{XR+k}, v{ACC+2*k}, v{ACC+2*k+1}")
        if k == 3: a(f"buffer_store_dwordx4 {vr(XR,4)}, v10, s[52:55], 0 offen")
    a(f"buffer_store_dwordx4 {vr(XR+4,4)}, v10, s[52:55], 0 offen offset:32")
    ts_end(a, True)
    a("s_endpgm")
    a.label("KF_RT")
    a(f"""
    s_sub_u32 s82, s82, 1
    s_cbranch_scc1 KF_RE
    s_sleep {FSL}
    """)
    for s in range(4):
        a(f"s_bitcmp1_b32 s23, {s}")
        a(f"s_cbranch_scc0 KF_RL{s}")
        for u in range(4):
            a(f"global_load_dwordx4 {vr(PD+16*s+4*u,4)}, v6, s[{60+2*s}:{61+2*s}] offset:{1024*u}{SC}")
        a.label(f"KF_RL{s}")
    a("s_waitcnt vmcnt(0)")
    for s in range(4):
        a(f"s_bitcmp1_b32 s23, {s}")
        a(f"s_cbranch_scc0 KF_Xb{s}")
        chk(s, "b")
    a("s_cmp_lg_u32 s23, 0")
    a("s_cbranch_scc1 KF_RT")
    a("s_branch KF_RE")
    Q, KF_, VF_, S_, O_, TL = 104, 120, 136, 64, 32, 152
    O = [32, 88]
    a.label("KF_FB")
    kvaddr(a, 4, 7, 0, 12, 13, 14)
    a(f"""
    s_lshl_b32 s17, s9, 12
    s_add_u32 s17, s17, {L_FB}
    v_add_u32 v4, s17, v4
    v_xor_b32 v5, 128, v4
    v_add_u32 v8, s17, v7
    v_xor_b32 v9, 128, v8
    v_add_u32 v7, s17, v1
    s_lshl_b32 s18, s19, 12
    v_add_u32 v6, s18, v6
    s_lshl_b32 s18, s19, 2
    s_add_u32 s18, s18, {L_FLG + 304}
    v_mov_b32 v12, s18
    """)
    a.label("KF_FQ")
    a(f"""
    s_sleep 2
    ds_read_b32 v13, v12
    s_waitcnt lgkmcnt(0)
    v_cmp_eq_u32 vcc, 0, v13
    s_cbranch_vccnz KF_FQ
    """)
    for s in range(4): a(f"ds_read_b128 {vr(Q+4*s,4)}, v6 offset:{L_QS+1024*s}")
    for b in range(2):
        for k in range(8): a(f"v_mov_b64 {vr(O[b]+2*k,2)}, 0")
    a(f"""
    v_mov_b32 v11, 0xff7fffff
    s_mov_b32 s17, 0
    """)
    a.label("KF_FL")
    for q in range(4): a(f"buffer_load_dwordx4 {vr(TL+4*q,4)}, v1, s[32:35], s17 offen offset:{1024*q}{SC}")
    a("s_waitcnt vmcnt(0)")
    for q in range(4): a(f"ds_write_b128 v7, {vr(TL+4*q,4)} offset:{1024*q}")
    for s in range(4): a(f"ds_read_b128 {vr(KF_+4*s,4)}, v{4+(s&1)} offset:{1024*s}")
    for ks in range(2):
        for b in range(2):
            for j in range(2):
                a(f"ds_read_b64_tr_b16 {vr(VF_+4*(2*ks+b)+2*j,2)}, v{8+j} offset:{b*2048+ks*256}")
    a("s_waitcnt lgkmcnt(0)")
    for s in range(4): a(mfma(S_, KF_+4*s, Q+4*s, 0 if s == 0 else None))
    a(f"""
    s_nop 15
    s_cmp_lg_u32 s17, {312*4096:#x}
    s_cbranch_scc1 KF_FM
    """)
    for r in range(8, 16): a(f"v_mov_b32 v{S_+r}, 0xff7fffff")
    a.label("KF_FM")
    a(f"v_max3_f32 v12, v11, v{S_}, v{S_+1}")
    for r in range(2, 16, 2): a(f"v_max3_f32 v12, v12, v{S_+r}, v{S_+r+1}")
    a(f"""
    v_mov_b32 v13, v12
    s_nop 1
    v_permlane32_swap_b32 v12, v13
    v_max_f32 v13, v12, v13
    v_sub_f32 v14, v11, v13
    v_exp_f32 v14, v14
    v_mov_b32 v11, v13
    """)
    for r in range(16): a(f"v_sub_f32 v{S_+r}, v{S_+r}, v13")
    for b in range(2):
        for k in range(8): a(f"v_pk_mul_f32 {vr(O[b]+2*k,2)}, {vr(O[b]+2*k,2)}, v[14:15] op_sel_hi:[1,0]")
    for r in range(16): a(f"v_exp_f32 v{S_+r}, v{S_+r}")
    a("s_nop 0")
    for p in range(8): a(f"v_cvt_pk_bf16_f32 v{S_+(p&3)+8*(p>>2)}, v{S_+2*p}, v{S_+2*p+1}")
    a("s_nop 1")
    for ks in range(2):
        for b in range(2): a(mfma(O[b], VF_+4*(2*ks+b), S_+8*ks))
    a(f"""
    s_add_u32 s17, s17, 4096
    s_cmp_le_u32 s17, {312*4096:#x}
    s_cbranch_scc1 KF_FL
    s_nop 15
    v_mov_b32 v12, v{O[1]+15}
    v_mov_b32 v13, v{O[1]+15}
    """)
    for b in range(2):
        for k in range(8): a(f"v_cvt_pk_bf16_f32 v{Q+8*b+k}, v{O[b]+2*k}, v{O[b]+2*k+1}")
    a("v_permlane32_swap_b32 v12, v13")
    a("s_nop 1")
    for u in range(4): a(mfma(ACC, WV_+4*u, Q+4*u, 0 if u == 0 else None))
    a("s_nop 15")
    a("s_branch KF_FT")

    a.label("KF_SLOW")
    a(f"""
    s_mul_i32 s21, s9, 10
    s_mul_i32 s22, s9, 2560
    v_lshlrev_b32 v6, 2, v0
    v_add_u32 v6, {L_LIST}, v6
    v_add_u32 v7, s22, v6
    v_mov_b32 v8, 0
    v_lshlrev_b32 v9, 1, v0              ; lane*2
    v_add_u32 v10, s24, v9
    buffer_load_ushort v41, v10, s[68:71], 0 offen
    """)
    for k in range(10): a(f"ds_write_b32 v7, v8 offset:{256*k}")
    srd(a, 44, 4, 5, WS_H16, N*128)
    a(f"s_mov_b32 s25, 0")
    a.label("KF_SP")
    a(f"""
    s_mul_i32 s28, s25, {ESTR}
    s_add_u32 s26, s28, s17
    v_mov_b32 v10, s26
    buffer_load_dword v10, v10, s[40:43], 0 offen{SC}
    s_waitcnt vmcnt(0)
    v_readfirstlane_b32 s27, v10
    s_and_b32 s29, s27, 0xffff
    s_add_u32 s28, s28, s29
    s_lshr_b32 s29, s27, 16
    s_add_u32 s29, s29, s28              ; end
    """)
    a.label("KF_SE")
    a(f"""
    s_cmp_ge_u32 s28, s29
    s_cbranch_scc1 KF_SPN
    v_mov_b32 v10, s28
    buffer_load_dword v10, v10, s[40:43], 0 offen{SC}
    s_add_u32 s28, s28, 4
    s_waitcnt vmcnt(0)
    v_readfirstlane_b32 s27, v10
    s_lshr_b32 s30, s27, 18
    s_sub_u32 s31, s30, s21
    s_cmp_ge_u32 s31, 10
    s_cbranch_scc1 KF_SE
    s_and_b32 s27, s27, 0xffff
    s_lshl_b32 s27, s27, 7
    v_add_u32 v12, s27, v9
    buffer_load_ushort v10, v12, s[44:47], 0 offen{SC}
    s_lshl_b32 s30, s30, 8
    v_add_u32 v11, s30, v6
    ds_read_b32 v14, v11
    s_waitcnt vmcnt(0) lgkmcnt(0)
    v_cvt_f32_f16 v10, v10
    v_add_f32 v10, v10, v14
    ds_write_b32 v11, v10
    s_branch KF_SE
    """)
    a.label("KF_SPN")
    a(f"""
    s_add_u32 s25, s25, 1
    s_cmp_lt_u32 s25, 250
    s_cbranch_scc1 KF_SP
    s_waitcnt lgkmcnt(0)
    s_lshr_b32 s22, s22, 1
    s_add_u32 s22, s22, {L_AGG}
    v_add_u32 v8, s22, v9
    """)
    for k in range(10): a(f"ds_read_b32 v{16+k}, v7 offset:{256*k}")
    a("s_waitcnt lgkmcnt(0)")
    for k in range(10):
        a(f"v_readlane_b32 s16, v41, s21")
        a(f"s_add_u32 s21, s21, 1")
        a(f"s_lshl_b32 s16, s16, 16")
        a(f"s_nop 1")
        a(f"v_mul_f32 v{16+k}, s16, v{16+k}")
        a(f"v_cvt_pk_bf16_f32 v{16+k}, v{16+k}, v{16+k}")
        a(f"ds_write_b16 v8, v{16+k} offset:{128*k}")
    a("s_branch KF_FS")

    AF, A63, BF, D, US = 44, 76, 92, 108, 16
    a.label("KF_AUX")
    a(f"""
    s_cmp_ge_u32 s6, 8
    s_cbranch_scc1 KF_END
    s_lshl_b32 s11, s6, 13
    s_add_u32 s11, s11, {WS_FBN:#x}
    v_lshl_add_u32 v1, v9, 7, s11
    v_mov_b64 v[2:3], 0
    v_mov_b64 v[4:5], 0
    s_lshl_b32 s10, s6, 2
    v_mov_b32 v6, s10
    v_mov_b32 v13, 1
    s_sub_u32 s9, s6, 4
    s_waitcnt lgkmcnt(0)
    s_mov_b32 s4, s58
    s_mov_b32 s5, s59
    s_cbranch_scc0 KF_WT
    global_store_dwordx4 v1, v[2:5], s[4:5]{SC}
    global_load_dword v20, v2, s[56:57] offset:128{SC}
    s_mov_b64 exec, 1
    s_waitcnt vmcnt(1)
    global_store_dword v6, v13, s[56:57]{SC}
    s_endpgm
    """)
    a.label("KF_WT")
    a(f"""
    v_mov_b32 v0, v9
    v_lshlrev_b32 v1, 4, v9
    v_and_b32 v7, 31, v0                 ; n
    v_lshrrev_b32 v8, 5, v0              ; h
    """)
    pi_calc(a, 9, 7, 10)
    a(f"""
    v_lshlrev_b32 v10, 4, v8             ; h*16
    v_add_u32 v11, {63*128}, v10
    s_cmp_ge_u32 s9, 2
    s_cselect_b32 s60, s50, s44
    s_cselect_b32 s61, s51, s45
    s_cselect_b32 s62, -1, 0
    s_cselect_b64 vcc, -1, 0
    s_and_b32 s63, s9, 1                 ; b
    v_cndmask_b32 v7, v9, v7, vcc
    v_lshl_add_u32 v7, v7, 7, v10
    v_add_u32 v15, 4096, v7
    s_lshl_b32 s63, s63, 6
    v_lshlrev_b32 v8, 10, v8
    v_lshl_add_u32 v8, v9, 1, v8
    v_add_u32 v8, s63, v8
    v_add_u32 v9, 4096, v8
    """)
    for s in range(4):
        for j in range(8):
            a(f"global_load_ushort v{D+8*s+j}, v{8+s//2}, s[52:53] offset:{(s&1)*2048 + j*128}")
    for A_ in range(2):
        for s in range(4):
            a(f"global_load_dwordx4 {vr(AF+16*A_+4*s,4)}, v{7+8*A_}, s[60:61] offset:{32*s}")
    for s in range(4):
        a(f"global_load_dwordx4 {vr(A63+4*s,4)}, v11, s[60:61] offset:{32*s}")
    a(f"""
    s_lshl_b32 s63, s9, 12
    s_add_u32 s63, s63, {WS_W:#x}
    s_add_u32 s64, s4, s63
    s_addc_u32 s65, s5, 0
    s_mov_b32 s63, 0x80008000
    s_waitcnt vmcnt(12)
    """)
    for k in range(16): a(f"v_lshl_or_b32 v{BF+k}, v{D+1+2*k}, 16, v{D+2*k}")
    a("s_waitcnt vmcnt(0)")
    for k in range(16):
        a(f"v_xor_b32 v{A63+k}, s63, v{A63+k}")
        a(f"v_and_b32 v{A63+k}, s62, v{A63+k}")
    a("s_nop 1")
    for s in range(4): a(mfma(D, A63+4*s, BF+4*s, 0 if s == 0 else None))
    a("s_nop 9")
    for s in range(4): a(mfma(D+16, AF+16+4*s, BF+4*s, str(D) if s == 0 else None))
    for s in range(4): a(mfma(D, AF+4*s, BF+4*s))
    a("s_nop 11")
    for k in range(16): a(f"v_cvt_pk_bf16_f32 v{AF+k}, v{D+2*k}, v{D+2*k+1}")
    for s in range(4): a(f"global_store_dwordx4 v1, {vr(AF+4*s,4)}, s[64:65] offset:{1024*s}{SC}")
    a(f"""
    s_mov_b64 exec, 1
    s_waitcnt vmcnt(0)
    global_store_dword v6, v13, s[56:57]{SC}
    s_endpgm
    """)
```
